```python
import torch

def _softmax(x, axis=-1):
    return torch.softmax(x, dim=axis)
def _gelu(x):
    return torch.nn.functional.gelu(x, approximate="tanh")
def _silu(x):
    return torch.nn.functional.silu(x)
def _sigmoid(x):
    return torch.sigmoid(x)
def _layernorm(x, axis=-1, eps=1e-5):
    m = x.mean(dim=axis, keepdim=True)
    v = x.var(dim=axis, keepdim=True, unbiased=False)
    return (x - m) / torch.sqrt(v + eps)
def _scatter_add(tgt, idx, src, axis=0):
    return tgt.clone().index_add_(axis, idx, src)
def _segment_sum(src, seg, n):
    out = torch.zeros((n,) + src.shape[1:], dtype=src.dtype)
    return out.index_add_(0, seg, src)
def _pad(x, pw):
    flat = tuple(v for pair in reversed(pw) for v in pair)
    return torch.nn.functional.pad(x, flat)

kernel_name = 'recurrent_scan__compressed_kv_cla__glu_gated_glu__prompt'

def setup_inputs():

    _w = (lambda a: (lambda t: t.to(torch.bfloat16) if t.is_floating_point() else t)(torch.as_tensor(a)))
    def _A_setup():
        B, H, Sq, Sk, D, M = 1, 32, 2048, 2048, 128, 512
        Dc = 4 * D
        return {
            "x": _w((lambda *s: torch.randn(*s, dtype=torch.bfloat16) * 0.05)(B, Sq, M)),
            "c_kv": _w((lambda *s: torch.randn(*s, dtype=torch.bfloat16) * 0.2)(B, Sk, Dc)),
            "w_q": _w((lambda *s: torch.randn(*s, dtype=torch.bfloat16) * 3.2)(M, H, D) * (M ** -0.5)),
            "w_uk": _w((lambda *s: torch.randn(*s, dtype=torch.bfloat16) * 3.2)(Dc, H, D) * (Dc ** -0.5)),
            "w_uv": _w((lambda *s: torch.randn(*s, dtype=torch.bfloat16) * 0.2)(Dc, H, D) * (Dc ** -0.5)),
            "w_o": _w((lambda *s: torch.randn(*s, dtype=torch.bfloat16) * 0.2)(H, D, M) * ((H * D) ** -0.5)),
        }
    _A_in = _A_setup()

    def _B_setup():
        B, S, D, F = 1, 2048, 512, 1792
        return {
            "x": _w((lambda *s: torch.randn(*s, dtype=torch.bfloat16) * 0.05)(B, S, D)),
            "w_gate": _w((lambda *s: torch.randn(*s, dtype=torch.bfloat16) * 0.2)(D, F)),
            "w_up": _w((lambda *s: torch.randn(*s, dtype=torch.bfloat16) * 0.1)(D, F)),
            "w_down": _w((lambda *s: torch.randn(*s, dtype=torch.bfloat16) * 0.1)(F, D)),
        }
    _B_in = _B_setup()

    return {
        "A_x": _A_in["x"],
        "A_c_kv": _A_in["c_kv"],
        "A_w_q": _A_in["w_q"],
        "A_w_uk": _A_in["w_uk"],
        "A_w_uv": _A_in["w_uv"],
        "A_w_o": _A_in["w_o"],
        "B_x": _B_in["x"],
        "B_w_gate": _B_in["w_gate"],
        "B_w_up": _B_in["w_up"],
        "B_w_down": _B_in["w_down"],
    }

def reference(A_x, A_c_kv, A_w_q, A_w_uk, A_w_uv, A_w_o, B_x, B_w_gate, B_w_up, B_w_down):
    def _A_ref(x, c_kv, w_q, w_uk, w_uv, w_o):
        B, Sq, M = x.shape[0], x.shape[1], x.shape[2]
        Sk = c_kv.shape[1]
        H, D = w_q.shape[1], w_q.shape[2]
        q = torch.einsum("bqm,mhd->bhqd", x, w_q)
        k = torch.einsum("bkc,chd->bhkd", c_kv, w_uk)
        v = torch.einsum("bkc,chd->bhkd", c_kv, w_uv)
        scores = torch.einsum("bhqd,bhkd->bhqk", q, k) * (D ** -0.5)
        off = Sk - Sq
        qi = torch.arange(Sq)[:, None]
        kj = torch.arange(Sk)[None, :]
        cmask = kj <= (qi + off)
        scores = torch.where(cmask[None, None], scores, -1e9)
        p = _softmax(scores, axis=-1)
        ctx = torch.einsum("bhqk,bhkd->bhqd", p, v)
        return torch.einsum("bhqd,hdm->bqm", ctx, w_o)

    def _B_ref(x, w_gate, w_up, w_down):
        g = torch.einsum("bsd,df->bsf", x, w_gate)
        u = torch.einsum("bsd,df->bsf", x, w_up)
        h = _sigmoid(g) * u
        return torch.einsum("bsf,fd->bsd", h, w_down)

    x = A_x
    xn = _layernorm(x, axis=-1)
    s = _A_ref(xn, A_c_kv, A_w_q, A_w_uk, A_w_uv, A_w_o)
    g = _silu(_B_ref(xn, B_w_gate, B_w_up, B_w_down))
    return x + s * g
```

```python
import re
_R = re.compile(r'^([vs])\[(\d+):(\d+)\]$|^([vs])(\d+)$')
def regs(op):
    op = op.strip()
    if op.startswith('-'): op = op[1:]
    if op.startswith('|'): op = op.strip('|')
    if op == 'vcc': return {('s', 106), ('s', 107)}
    if op == 'exec': return {('s', 126), ('s', 127)}
    if op == 'm0': return {('s', 124)}
    m = _R.match(op)
    if not m: return set()
    if m.group(1): return {(m.group(1), i) for i in range(int(m.group(2)), int(m.group(3)) + 1)}
    return {(m.group(4), int(m.group(5)))}
def V(b, n=1): return f"v{b}" if n == 1 else f"v[{b}:{b+n-1}]"
def S(b, n=1): return f"s{b}" if n == 1 else f"s[{b}:{b+n-1}]"
TRANS = ('v_exp_f32', 'v_rcp_f32', 'v_rsq_f32', 'v_sqrt_f32', 'v_log_f32')
class Asm:
    def __init__(s):
        s.out = []; s.t = 0
        s.vw = {}
        s.tw = {}
        s.mw = {}
        s.mc = {}
        s.sw = {}
        s.m0 = -99
        s.st = {}
        s.vm = 0; s.vm_done = 0; s.lg = 0; s.lg_done = 0
        s.ninst = 0
    def raw(s, txt): s.out.append(txt)
    def comment(s, txt): s.out.append("    ; " + txt)
    def _nop(s, n):
        while n > 0:
            k = min(n, 8); s.out.append(f"    s_nop {k-1}"); s.t += k; n -= k; s.ninst += 1
    def I(s, op, *ops, mod=""):
        ops = [str(o) for o in ops]
        rs = [regs(o) for o in ops]
        isv = op.startswith('v_'); mf = op.startswith('v_mfma'); vmem = op.startswith('buffer_'); ds = op.startswith('ds_')
        lds = vmem and ' lds' in (' ' + mod)
        W = set(); R = set()
        if mf: W = rs[0]; R = rs[1] | rs[2] | rs[3]
        elif 'swap' in op: W = rs[0] | rs[1]; R = set(W)
        elif vmem:
            if 'store' in op or lds: R = set().union(*rs)
            else: W = rs[0]; R = set().union(*rs[1:])
        elif ds:
            if 'read' in op: W = rs[0]; R = set().union(*rs[1:])
            else: R = set().union(*rs)
        elif op.startswith('s_cmp') or op.startswith('s_waitcnt') or op in ('s_barrier', 's_endpgm', 's_setprio', 's_nop', 's_sleep') or op.startswith('s_cbranch') or op == 's_branch':
            R = set().union(*rs) if rs else set()
        else:
            W = rs[0]; R = set().union(*rs[1:]) if len(rs) > 1 else set()
            if op in ('v_fmac_f32', 'v_mac_f32'): R |= W
            if op.startswith('v_cndmask') and len(ops) == 3: R |= regs('vcc')
            if op.startswith('v_add_co') or op.startswith('v_addc'): raise Exception('nyi')
        need = 0
        def req(t0, n):
            nonlocal need
            need = max(need, t0 + n + 1 - s.t - 0)
        now = s.t
        def chk(d, regsx, n):
            nonlocal need
            for r in regsx:
                if r in d:
                    t0 = d[r]
                    need = max(need, n - (now - t0 - 1))
        if mf:
            chk(s.vw, R, 2)
            for r in rs[1] | rs[2]:
                if r in s.mw: need = max(need, 12 - (now - s.mw[r][0] - 1))
            for r in rs[3] | W:
                if r in s.mw and not (s.mw[r][1] == ops[0] == ops[3]): need = max(need, 12 - (now - s.mw[r][0] - 1))
            chk(s.mc, W - rs[3], 7)
        elif isv or vmem or ds:
            for r in R | W:
                if r in s.mw: need = max(need, 12 - (now - s.mw[r][0] - 1))
            chk(s.mc, W, 7)
            chk(s.st, W, 2)
            if isv:
                if op not in TRANS: chk(s.tw, R, 1)
                else: chk(s.tw, R, 1)
                chk(s.sw, R, 2 if 'readlane' not in op else 4)
                if 'readfirstlane' in op or 'readlane' in op: chk(s.vw, R, 1)
                if 'permlane' in op or 'dpp' in op or 'row_' in mod or 'quad_perm' in mod: chk(s.vw, R, 2)
            else:
                chk(s.sw, R, 5); chk(s.tw, R, 1)
                if lds: need = max(need, 1 - (now - s.m0 - 1))
        else:
            chk(s.sw, R, 1)
        if need > 0: s._nop(need)
        s.out.append(f"    {op} " + ", ".join(ops) + ((" " + mod) if mod else ""))
        t = s.t; s.t += 1; s.ninst += 1
        if mf:
            for r in W: s.mw[r] = (t, ops[0]); s.vw.pop(r, None)
            for r in rs[3]: s.mc[r] = t
        elif isv:
            for r in W:
                s.mw.pop(r, None)
                if r[0] == 'v':
                    s.vw[r] = t
                    if op in TRANS: s.tw[r] = t
                else: s.sw[r] = t
        elif not (vmem or ds):
            if ('s', 124) in W: s.m0 = t
            for r in W: s.sw.pop(r, None)
        if vmem:
            if 'store' in op and ('x4' in op or 'x3' in op or 'x2' in op):
                for r in rs[0]: s.st[r] = t
            s.vm += 1; return s.vm
        if ds:
            if 'write' in op:
                for r in R: s.st[r] = t
            s.lg += 1; return s.lg
    def wvm(s, tok):
        if tok is None or tok <= s.vm_done: return
        n = s.vm - tok; assert n >= 0
        if n > 63: return s.wvm_n(63)
        s.I('s_waitcnt', f'vmcnt({n})'); s.vm_done = tok
    def wvm_n(s, n):
        s.I('s_waitcnt', f'vmcnt({n})'); s.vm_done = max(s.vm_done, s.vm - n)
    def wlg(s, tok):
        if tok is None or tok <= s.lg_done: return
        n = min(s.lg - tok, 15)
        s.I('s_waitcnt', f'lgkmcnt({n})'); s.lg_done = s.lg - n
    def wall(s):
        s.I('s_waitcnt', 'vmcnt(0) lgkmcnt(0)'); s.vm_done = s.vm; s.lg_done = s.lg
    def drain(s):
        need = 0
        for d, n in ((s.vw, 2), (s.tw, 1), (s.mc, 7), (s.sw, 5), (s.st, 2)):
            for r, t0 in d.items(): need = max(need, n - (s.t - t0 - 1))
        for r, (t0, _) in s.mw.items(): need = max(need, 12 - (s.t - t0 - 1))
        need = max(need, 1 - (s.t - s.m0 - 1))
        if need > 0: s._nop(need)
    def restamp(s, k):
        for r, (t0, d) in list(s.mw.items()):
            if s.t - t0 < 200: s.mw[r] = (max(t0, s.t - k), d)
        for r, t0 in list(s.mc.items()):
            if s.t - t0 < 200: s.mc[r] = max(t0, s.t - k)
    def br(s, op, label, drain=True):
        if drain: s.drain()
        s.I(op, label)
    def label(s, name, pad=0):
        s.out.append(name + ":")
        if pad: s._nop(pad)
    def srd(s, dst, ptr, nbytes, add=0):
        if add:
            s.I('s_add_u32', S(dst), S(ptr), hex(add)); s.I('s_addc_u32', S(dst + 1), S(ptr + 1), 0)
        else:
            s.I('s_mov_b32', S(dst), S(ptr)); s.I('s_mov_b32', S(dst + 1), S(ptr + 1))
        s.I('s_mov_b32', S(dst + 2), hex(nbytes)); s.I('s_mov_b32', S(dst + 3), '0x00020000')
    def text(s): return "\n".join(s.out) + "\n"
```

```python
from gen import *
import os
KN=os.environ.get('KN','')
def k2(a):
    name = 'k2_kernel'; head(a, name, 256); stamp(a, 0, '2')
    ACC, ACT, WF = 0, 64, 192
    O, S0, S1, E, P0, P1, Q, NEGM, FR = 0, 64, 80, 96, 112, 120, 128, 160, 176
    vLane, vWrd, vWq, vWg, vL16, vKrd, vVrd, vD, vNinf, vL, vBs, vA, vB, T = 224, 237, 226, 227, 228, 229, 230, 231, 232, 233, 234, 235, 236, 240
    sW, sH, sI, sT, sT2, sWm0, sTB, sG, sWp, sNA, sU, sRem, sKm0, sVm0, sKVb, sThr, sLow, sSeg, sTBo, sVs, sRown, sRpar = range(34, 56)
    rXN, rQ, rG, rU, rKV, rH, rCTX = 60, 64, 68, 72, 76, 80, 84
    a.I('v_and_b32', V(vLane), 63, 'v0'); a.I('v_lshrrev_b32', V(T), 6, 'v0'); a.I('v_readfirstlane_b32', S(sW), V(T))
    a.I('s_and_b32', S(sH), 's2', 7); a.I('s_lshl_b32', S(sH), S(sH), 2); a.I('s_bfe_u32', S(sT), 's2', '0x20003'); a.I('s_add_u32', S(sH), S(sH), S(sT))
    a.I('s_lshr_b32', S(sI), 's2', 5)
    a.I('s_lshr_b32', S(sG), S(sW), 2); a.I('s_and_b32', S(sWp), S(sW), 3)
    a.I('s_sub_u32', S(sNA), 16, S(sI))
    a.I('s_sub_u32', S(sT), 15, S(sI)); a.I('s_cmp_eq_u32', S(sG), 0); a.I('s_cselect_b32', S(sTB), S(sT), S(sI))
    a.I('s_lshl_b32', S(sTB), S(sTB), 2); a.I('s_add_u32', S(sTB), S(sTB), S(sWp))
    a.I('s_lshl_b32', S(sTBo), S(sT), 2); a.I('s_add_u32', S(sTBo), S(sTBo), S(sWp))
    lane_w_setup(a, vLane, vWrd, 65536, T)
    a.I('s_lshl_b32', S(sT2), S(sH), 8); w_voff(a, vWq, vLane, sW, 8192, sT2, T, sT)
    a.I('s_min_u32', S(sU), S(sH), 27); a.I('s_lshl_b32', S(sT2), S(sU), 7); w_voff(a, vWg, vLane, sW, 3584, sT2, T, sT)
    a.I('v_lshlrev_b32', V(vL16), 4, V(vLane))
    a.I('s_lshl_b32', S(sWm0), S(sW), 10); a.I('s_add_u32', S(sWm0), S(sWm0), 65536)
    a.I('s_waitcnt', 'lgkmcnt(0)')
    a.srd(rXN, sWS, 2 << 20, XN_OFF); a.srd(rQ, sWQ, 4 << 20); a.srd(rG, sWG, 512 * 3584); a.srd(rU, sWU, 512 * 3584)
    a.srd(rKV, sWS, 32 << 20, KV_OFF); a.srd(rH, sWS, 64 * 112 * 1024, HF_OFF); a.srd(rCTX, sWS, 16 << 20, CTX_OFF)
    def epi_h():
        for i in range(32):
            a.I('v_mul_f32', V(ACC + i), '0xbfb8aa3b', V(ACC + i))
            a.I('v_exp_f32', V(ACC + i), V(ACC + i))
            if i: a.I('v_add_f32', V(ACC + i - 1), 1.0, V(ACC + i - 1)); a.I('v_rcp_f32', V(ACC + i - 1), V(ACC + i - 1))
            if i > 1: a.I('v_mul_f32', V(ACC + i - 2), V(ACC + i - 2), V(ACC + 32 + i - 2))
        a.I('v_add_f32', V(ACC + 31), 1.0, V(ACC + 31)); a.I('v_rcp_f32', V(ACC + 31), V(ACC + 31))
        for i in (30, 31): a.I('v_mul_f32', V(ACC + i), V(ACC + i), V(ACC + 32 + i))
        a.I('s_mul_i32', S(sT2), S(sTB), 112 * 1024); a.I('s_lshl_b32', S(sU), S(sU), 12); a.I('s_add_u32', S(sT2), S(sT2), S(sU))
        a.I('v_add_u32', V(vA), S(sT2), V(vL16))
        pack_store(a, ACC, T, vA, rH, sT2, 0, 4)
    g = Gemm(a, [dict(stride=3584, uoff=(0, 0), voff=vWg, srd=(rG, rU), swap=False, epi=epi_h),
                 dict(stride=8192, uoff=(0, 128), voff=vWq, srd=(rQ, rQ), swap=False, epi=lambda: None)], ACT, ACC, WF, vWrd, sWm0, sT)
    at = {}
    a.I('s_lshl_b32', S(sSeg), S(sTB), 15)
    def ld_act(k0, k1):
        for k in range(k0, k1):
            if k % 4 == 0: a.I('s_add_u32', S(sT2), S(sSeg), hex(k * 1024))
            at[k] = a.I('buffer_load_dwordx4', V(ACT + 4 * k, 4), V(vL16), S(rXN, 4), S(sT2), mod=f'offen offset:{(k%4)*1024}')
    g.dma(0); ld_act(0, 8); g.dma(1); ld_act(8, 16); g.dma(2); ld_act(16, 32)
    a.I('s_lshl_b32', S(sKVb), S(sH), 20); a.I('s_lshl_b32', S(sT), S(sG), 15); a.I('s_add_u32', S(sKVb), S(sKVb), S(sT))
    a.I('s_lshl_b32', S(sT), S(sWp), 12); a.I('s_add_u32', S(sKVb), S(sKVb), S(sT))
    a.I('s_lshl_b32', S(sKm0), S(sW), 12); a.I('s_add_u32', S(sVm0), S(sKm0), 65536)
    a.I('s_lshl_b32', S(sT), S(sG), 14); a.I('v_add_u32', V(vKrd), S(sT), V(vL16)); a.I('v_add_u32', V(vVrd), 98304, V(vKrd))
    a.I('v_and_b32', V(vD), 31, V(vLane)); a.I('v_lshrrev_b32', V(T), 5, V(vLane)); a.I('v_lshlrev_b32', V(T), 2, V(T)); a.I('v_sub_u32', V(vD), V(vD), V(T))
    a.I('s_lshl_b32', S(sT), S(sWp), 5); a.I('s_lshl_b32', S(sT2), S(sG), 6); a.I('s_sub_u32', S(sT), S(sT), S(sT2)); a.I('v_add_u32', V(vD), S(sT), V(vD))
    a.I('v_mov_b32', V(vNinf), '0xff800000')
    def kv_dma(sm0, soff):
        a.I('s_mov_b32', 'm0', S(sm0))
        for q in range(4): a.I('buffer_load_dwordx4', V(vL16), S(rKV, 4), S(soff), mod=f'offen offset:{q*1024} lds')
        a.I('s_xor_b32', S(sm0), S(sm0), 32768)
    def mid(C):
        if C == 8: stamp(a, 2, '2')
        if C == 10: kv_dma(sKm0, sKVb)
        if C == 12: a.I('s_add_u32', S(sT2), S(sKVb), 65536); kv_dma(sKm0, sT2)
    a.wvm(g.wt[0]); a.I('s_barrier'); stamp(a, 1, '2')
    g.run(mid, lambda t: a.wvm(at.get(t)) if t < 32 else None)
    a.I('s_barrier')
    a.I('s_add_u32', S(sT2), S(sKVb), 16384); kv_dma(sVm0, sT2)
    a.I('s_lshl_b32', S(sT), S(sW), 13); a.I('s_add_u32', S(sT), S(sT), 98304); a.I('v_add_u32', V(vA), S(sT), V(vL16))
    a.I('s_mov_b32', S(sT2), '0x3e0293ee')
    for f in range(8):
        for j in range(8): a.I('v_mul_f32', V(ACC + 8 * f + j), S(sT2), V(ACC + 8 * f + j))
        for j in range(4): a.I('v_cvt_pk_bf16_f32', V(Q + 4 * f + j), V(ACC + 8 * f + 2 * j), V(ACC + 8 * f + 2 * j + 1))
        a.I('ds_write_b128', V(vA), V(Q + 4 * f, 4), mod=f'offset:{f*1024}')
    a.I('s_lshl_b32', S(sT), S(sWp), 13); a.I('s_add_u32', S(sT), S(sT), 98304); a.I('v_add_u32', V(vA), S(sT), V(vL16))
    a.wvm(a.vm - 8)
    a.wlg(a.lg); a.I('s_barrier')
    for f in range(8): a.I('ds_read_b128', V(Q + 4 * f, 4), V(vA), mod=f'offset:{f*1024}')
    a.I('s_mov_b32', S(sU), 0); a.I('s_sub_u32', S(sRem), S(sNA), 1); a.I('s_mov_b32', S(sSeg), 0)
    a.I('s_mov_b32', S(sVs), 98304)
    ool = []
    cnt = [0]
    ft = {}
    def frag_rd(slot, src):
        kind, blk, f = src
        ft[slot] = a.I('ds_read_b128', V(FR + (slot % 8) * 4, 4), V(vKrd if kind == 'K' else vVrd), mod=f'offset:{blk*8192+f*1024}')
    def section(items, nxt, bar, pre):
        srcs = []
        for (c, A_, b) in items:
            if c is not None: srcs += [('V', c, f) for f in range(8)]
            if A_ is not None: srcs += [('K', A_, f) for f in range(8)]
        n = len(srcs); D = 6
        allsrc = srcs + (nxt if not bar else [])
        issued = pre
        def fetch(upto):
            nonlocal issued
            while issued < min(upto, len(allsrc)): frag_rd(issued, allsrc[issued]); issued += 1
        slot = 0
        for (c, A_, b) in items:
            nsl = 8 * ((c is not None) + (A_ is not None))
            val = []
            if b is not None:
                Sx = (S0, S1)[b]; Px = (P0, P1)[b]
                for j in range(9):
                    if j < 8:
                        val.append((8, ('v_exp_f32', V(E + 2 * j), V(Sx + 2 * j)))); val.append((8, ('v_exp_f32', V(E + 2 * j + 1), V(Sx + 2 * j + 1))))
                    if j:
                        k = j - 1
                        val.append((4, ('v_cvt_pk_bf16_f32', V(Px + k), V(E + 2 * k), V(E + 2 * k + 1))))
                        if k == 0: val.append((4, ('v_add_f32', V(vBs), V(E), V(E + 1))))
                        else:
                            val.append((4, ('v_add_f32', V(E + 2 * k), V(E + 2 * k), V(E + 2 * k + 1))))
                            val.append((4, ('v_add_f32', V(vBs), V(vBs), V(E + 2 * k))))
                val.append((4, ('v_cmp_lt_f32', 'vcc', S(sThr), V(vBs))))
            tot = sum(x[0] for x in val); done = 0; vi = 0
            for k in range(nsl):
                fetch(slot + D)
                a.wlg(ft[slot])
                kind, blk, f = srcs[slot]; fr = V(FR + (slot % 8) * 4, 4)
                if kind == 'V':
                    d = V(O + (f >> 1) * 16, 16); a.I(MF, d, fr, V((P0, P1)[blk] + (f & 1) * 4, 4), d)
                else:
                    Sx_ = (S0, S1)[blk]; d = V(Sx_, 16)
                    if f == 0:
                        cnt[0] += 1; id_ = cnt[0]
                        a.I('s_cmp_eq_u32', S(sRem), 0); a.br('s_cbranch_scc1', f'k2_mask{id_}', drain=False)
                        a.I(MF, d, fr, V(Q, 4), V(NEGM, 16)); a.label(f'k2_mback{id_}')
                        def mk(id_=id_, Sx_=Sx_, blk=blk, fr=fr):
                            a.label(f'k2_mask{id_}', pad=16)
                            for i in range(16):
                                a.I('v_cmp_gt_i32', S(56, 2), 8 * (i // 4) + i % 4 + 32 * blk, V(vD))
                                a.I('v_cndmask_b32', V(Sx_ + i), V(NEGM + i), V(vNinf), S(56, 2))
                            a.I(MF, V(Sx_, 16), fr, V(Q, 4), V(Sx_, 16)); a.br('s_branch', f'k2_mback{id_}', drain=False)
                        ool.append(mk)
                    else: a.I(MF, d, fr, V(Q + 4 * f, 4), d)
                slot += 1
                if bar and slot == n - 2:
                    unitbar();
                    for q in range(5): frag_rd(n + q, nxt[q]); ft[q] = ft[n + q]
                    unitdma()
                while vi < len(val) and done < tot * (k + 1) / nsl - 1e-9:
                    a.I(*val[vi][1]); done += val[vi][0]; vi += 1
            if b is not None:
                cnt[0] += 1; id_ = cnt[0]
                a.br('s_cbranch_vccnz', f'k2_slow{id_}', drain=False); a.label(f'k2_sback{id_}')
                a.I('v_add_f32', V(vL), V(vL), V(vBs))
                def sl(id_=id_, Sx=Sx, Px=Px, So=(S0, S1)[1 - b] if A_ is not None else None):
                    a.label(f'k2_slow{id_}', pad=16)
                    a.I('v_max3_f32', V(vA), V(Sx), V(Sx + 1), V(Sx + 2))
                    for i in range(3, 15, 2): a.I('v_max3_f32', V(vA), V(vA), V(Sx + i), V(Sx + i + 1))
                    a.I('v_max_f32', V(vA), V(vA), V(Sx + 15))
                    a.I('v_mov_b32', V(vB), V(vA)); a.I('v_permlane32_swap_b32', V(vB), V(vA)); a.I('v_max_f32', V(vA), V(vA), V(vB))
                    a.I('v_max_f32', V(vA), S(sLow), V(vA))
                    a.I('v_max_f32', V(vB), 0, V(vA)); a.I('v_exp_f32', V(vB), '-' + V(vB))
                    for i in range(16): a.I('v_sub_f32', V(NEGM + i), V(NEGM + i), V(vA))
                    if So is not None:
                        for i in range(16): a.I('v_sub_f32', V(So + i), V(So + i), V(vA))
                    for i in range(64): a.I('v_mul_f32', V(O + i), V(O + i), V(vB))
                    a.I('v_mul_f32', V(vL), V(vL), V(vB))
                    for i in range(16): a.I('v_sub_f32', V(E + i), V(Sx + i), V(vA))
                    for i in range(16): a.I('v_exp_f32', V(E + i), V(E + i))
                    for k in range(8): a.I('v_cvt_pk_bf16_f32', V(Px + k), V(E + 2 * k), V(E + 2 * k + 1))
                    a.I('v_add_f32', V(vBs), V(E), V(E + 1))
                    for i in range(2, 16): a.I('v_add_f32', V(vBs), V(vBs), V(E + i))
                    a.I('s_mov_b32', S(sThr), '0x53800000'); a.I('s_mov_b32', S(sLow), 0)
                    a.br('s_branch', f'k2_sback{id_}')
                ool.append(sl)
        if not bar:
            k = issued - n
            for q in range(k): ft[q] = ft[n + q]
            return k
        return 5
    def unitbar():
        a.wall(); a.I('s_barrier')
        a.I('v_xor_b32', V(vKrd), 32768, V(vKrd)); a.I('v_xor_b32', V(vVrd), 32768, V(vVrd)); a.I('s_xor_b32', S(sVs), S(sVs), 32768)
    def unitdma():
        cnt[0] += 1; id_ = cnt[0]; t0 = a.t
        for (add, sm0, extra) in ((1, sVm0, 16384), (2, sKm0, 0)):
            a.I('s_add_u32', S(sT), S(sU), add); a.I('s_cmp_gt_u32', S(sT), 16); a.br('s_cbranch_scc1', f'k2_nodma{id_}', drain=False)
            a.I('s_cmp_ge_u32', S(sT), S(sNA)); a.I('s_cselect_b32', S(sT2), S(sNA), 0); a.I('s_sub_u32', S(sT), S(sT), S(sT2))
            a.I('s_lshl_b32', S(sT), S(sT), 16); a.I('s_add_u32', S(sT), S(sT), S(sKVb))
            if extra: a.I('s_add_u32', S(sT), S(sT), extra)
            if 'nokv' not in KN: kv_dma(sm0, sT)
        a.label(f'k2_nodma{id_}'); a.t = t0 + 3
        a.I('s_add_u32', S(sU), S(sU), 1)
    V0 = [('V', 0, f) for f in range(8)]
    if 'noatt' in KN: a.wall(); a.br('s_branch', name + '_end')
    stamp(a, 3, '2'); a.drain()
    a.label('k2_seg')
    for i in range(64): a.I('v_mov_b32', V(O + i), 0)
    for i in range(16): a.I('v_mov_b32', V(NEGM + i), 0)
    a.I('v_mov_b32', V(vL), 0); a.I('s_mov_b32', S(sThr), '0xbf800000'); a.I('s_mov_b32', S(sLow), '0xf149f2ca')
    section([(None, 0, None), (None, 1, 0)], V0, True, 0)
    a.I('s_cmp_eq_u32', S(sRem), 0); a.br('s_cbranch_scc1', 'k2_tail', drain=False)
    a.label('k2_loop'); a.restamp(4)
    a.I('s_sub_u32', S(sRem), S(sRem), 1)
    section([(0, 0, 1), (1, 1, 0)], V0, True, 5)
    a.I('s_cmp_lg_u32', S(sRem), 0); a.br('s_cbranch_scc1', 'k2_loop', drain=False)
    a.label('k2_tail'); stamp(a, 5, '2')
    section([(0, None, 1), (1, None, None)], [], False, 5)
    a.I('s_lshl_b32', S(sT), S(sWp), 13); a.I('s_add_u32', S(sT2), S(sT), 131072); a.I('v_add_u32', V(vA), S(sT2), V(vL16))
    for f in range(8): a.I('ds_read_b128', V(Q + 4 * f, 4), V(vA), mod=f'offset:{f*1024}')
    a.I('s_add_u32', S(sT), S(sT), S(sVs))
    a.I('s_cmp_eq_u32', S(sG), 0); a.I('s_cselect_b32', S(sRown), S(sT), S(sT2)); a.I('s_cselect_b32', S(sRpar), S(sT2), S(sT))
    a.I('v_mov_b32', V(vB), V(vL)); a.I('v_permlane32_swap_b32', V(vB), V(vL)); a.I('v_add_f32', V(vL), V(vL), V(vB))
    a.I('v_cmp_gt_u32', 'vcc', 32, V(vLane)); a.I('v_cndmask_b32', V(vB), V(vL), V(NEGM))
    a.I('v_lshlrev_b32', V(T), 2, V(vLane)); a.I('v_add_u32', V(T + 1), S(sRpar), V(T))
    a.I('v_and_b32', V(T), 127, V(T)); a.I('v_add_u32', V(T + 2), S(sRown), V(T))
    a.wlg(a.lg); a.I('s_barrier')
    a.I('ds_write_b32', V(T + 1), V(vB)); a.wlg(a.lg); a.I('s_barrier')
    a.I('ds_read_b32', V(T + 3), V(T + 2)); a.I('ds_read_b32', V(T + 4), V(T + 2), mod='offset:128')
    a.I('v_add_u32', V(T + 1), S(sRown), V(vL16)); a.I('v_add_u32', V(T + 2), S(sRpar), V(vL16))
    a.I('s_lshl_b32', S(sT), S(sTBo), 18); a.I('s_lshl_b32', S(sT2), S(sH), 13); a.I('s_add_u32', S(sT), S(sT), S(sT2))
    a.I('s_lshl_b32', S(sT2), S(sG), 12); a.I('s_add_u32', S(sT), S(sT), S(sT2)); a.I('v_add_u32', V(vA), S(sT), V(vL16))
    a.wlg(a.lg)
    a.I('s_cmp_eq_u32', S(sG), 0); a.br('s_cbranch_scc1', 'k2_m0')
    for gi in (1, 0):
        if gi == 0: a.label('k2_m0')
        keep = O + 32 * gi; send = O + 32 * (1 - gi)
        for q in range(8): a.I('ds_write_b128', V(T + 1), V(send + 4 * q, 4), mod=f'offset:{q*1024}')
        a.I('v_min_f32', V(T + 5), V(T + 3), V(NEGM))
        a.I('v_sub_f32', V(T + 6), V(T + 5), V(NEGM)); a.I('v_exp_f32', V(T + 6), V(T + 6))
        a.I('v_sub_f32', V(T + 7), V(T + 5), V(T + 3)); a.I('v_exp_f32', V(T + 7), V(T + 7))
        a.I('v_mul_f32', V(T + 5), V(vL), V(T + 6)); a.I('v_fmac_f32', V(T + 5), V(T + 4), V(T + 7)); a.I('v_rcp_f32', V(T + 5), V(T + 5))
        a.I('v_mul_f32', V(T + 6), V(T + 6), V(T + 5)); a.I('v_mul_f32', V(T + 7), V(T + 7), V(T + 5))
        a.wlg(a.lg); a.I('s_barrier')
        tk = [a.I('ds_read_b128', V(S0 + 4 * q, 4), V(T + 2), mod=f'offset:{q*1024}') for q in range(8)]
        for i in range(32): a.I('v_mul_f32', V(keep + i), V(keep + i), V(T + 6))
        for i in range(32):
            a.wlg(tk[i // 4]); a.I('v_fmac_f32', V(keep + i), V(S0 + i), V(T + 7))
        pack_store(a, keep, T + 8, vA, rCTX, sT2, 0, 4)
        if gi == 1: a.br('s_branch', 'k2_mdone')
    a.label('k2_mdone')
    a.I('s_cmp_lg_u32', S(sSeg), 0); a.br('s_cbranch_scc1', 'k2_fin')
    stamp(a, 4, '2')
    a.I('s_mov_b32', S(sSeg), 1); a.I('s_mov_b32', S(sRem), S(sI))
    a.I('s_lshl_b32', S(sTBo), S(sI), 2); a.I('s_add_u32', S(sTBo), S(sTBo), S(sWp))
    a.br('s_branch', 'k2_seg')
    for f in ool: f()
    a.label('k2_fin'); stamp_out(a, name, '2', sW)
    tail(a, name)
```

```python
from gen import *
import os
KN=os.environ.get('KN','')
def k3(a):
    name = 'k3_kernel'; head(a, name, 256)
    NS, R = 46, 5
    AS, AG, BUF, X = 0, 16, 32, 96
    vLane, vL16, vW1, vW2, vArd, vWrd, vX, T = 100, 101, 102, 103, 104, 105, 106, 108
    sW, sTT, sMT, sT, sT2, sM0, sAc, sAh, sKH, sT3 = range(34, 44)
    rC, rH, rO, rD, rX, rOut = 44, 48, 52, 56, 60, 64
    a.I('v_and_b32', V(vLane), 63, 'v0'); a.I('v_lshrrev_b32', V(T), 6, 'v0'); a.I('v_readfirstlane_b32', S(sW), V(T))
    a.I('s_and_b32', S(sTT), 's2', 7); a.I('s_lshl_b32', S(sTT), S(sTT), 2); a.I('s_lshr_b32', S(sT), 's2', 6); a.I('s_add_u32', S(sTT), S(sTT), S(sT))
    a.I('s_bfe_u32', S(sMT), 's2', '0x30003')
    a.I('v_lshlrev_b32', V(vL16), 4, V(vLane))
    a.I('s_lshr_b32', S(sKH), S(sW), 2)
    a.I('s_lshl_b32', S(sT), S(sTT), 1); a.I('s_add_u32', S(sT), S(sT), S(sKH))
    a.I('s_and_b32', S(sT2), S(sW), 3); a.I('s_lshl_b32', S(sT2), S(sT2), 11)
    a.I('s_lshl_b32', S(sAc), S(sT), 18); a.I('s_add_u32', S(sAc), S(sAc), S(sT2))
    a.I('s_mul_i32', S(sAh), S(sT), 112 * 1024); a.I('s_add_u32', S(sAh), S(sAh), S(sT2))
    a.I('s_lshl_b32', S(sM0), S(sW), 11)
    a.I('s_lshl_b32', S(sT3), S(sW), 1); a.I('s_lshl_b32', S(sT2), S(sMT), 7)
    w_voff(a, vW1, vLane, sT3, 1024, sT2, T, sT); a.I('v_add_u32', V(vW2), 7168, V(vW1))
    a.I('s_and_b32', S(sT), S(sW), 1); a.I('s_lshl_b32', S(sT), S(sT), 13); a.I('s_lshl_b32', S(sT2), S(sKH), 12); a.I('s_add_u32', S(sT), S(sT), S(sT2))
    a.I('v_add_u32', V(vArd), S(sT), V(vL16))
    a.I('v_lshrrev_b32', V(T), 5, V(vLane)); a.I('v_lshlrev_b32', V(vWrd), 8, V(T))
    a.I('v_bfe_u32', V(T), V(vLane), 2, 2); a.I('v_lshl_add_u32', V(vWrd), V(T), 6, V(vWrd))
    a.I('v_bfe_u32', V(T), V(vLane), 4, 1); a.I('v_lshl_add_u32', V(vWrd), V(T), 5, V(vWrd))
    a.I('v_and_b32', V(T), 3, V(vLane)); a.I('v_lshl_add_u32', V(vWrd), V(T), 3, V(vWrd))
    a.I('s_bfe_u32', S(sT), S(sW), '0x10001'); a.I('s_lshl_b32', S(sT), S(sT), 9); a.I('s_lshl_b32', S(sT2), S(sKH), 13)
    a.I('s_add_u32', S(sT), S(sT), S(sT2)); a.I('s_add_u32', S(sT), S(sT), 16384); a.I('v_add_u32', V(vWrd), S(sT), V(vWrd))
    a.I('v_add_u32', V(vArd + 16), 65536, V(vArd)); a.I('v_add_u32', V(vWrd + 16), 65536, V(vWrd))
    a.I('v_add_u32', V(vArd + 18), 131072, V(vArd)); a.I('v_add_u32', V(vWrd + 18), 131072, V(vWrd))
    a.I('v_and_b32', V(T), 31, V(vLane)); a.I('v_lshlrev_b32', V(vX), 10, V(T))
    a.I('v_lshrrev_b32', V(T), 5, V(vLane)); a.I('v_lshl_add_u32', V(vX), V(T), 3, V(vX))
    a.I('s_lshl_b32', S(sT), S(sTT), 1); a.I('s_and_b32', S(sT2), S(sW), 1); a.I('s_add_u32', S(sT), S(sT), S(sT2)); a.I('s_lshl_b32', S(sT), S(sT), 15)
    a.I('s_lshl_b32', S(sT2), S(sMT), 7); a.I('s_add_u32', S(sT), S(sT), S(sT2))
    a.I('s_bfe_u32', S(sT2), S(sW), '0x10001'); a.I('s_lshl_b32', S(sT2), S(sT2), 6); a.I('s_add_u32', S(sT), S(sT), S(sT2))
    a.I('s_lshl_b32', S(sT2), S(sKH), 5); a.I('s_add_u32', S(sT), S(sT), S(sT2)); a.I('v_add_u32', V(vX), S(sT), V(vX))
    a.I('s_waitcnt', 'lgkmcnt(0)')
    a.srd(rC, sWS, 16 << 20, CTX_OFF); a.srd(rH, sWS, 64 * 112 * 1024, HF_OFF); a.srd(rO, sWO, 4 << 20); a.srd(rD, sWD, 1792 * 1024)
    a.srd(rX, sX, 2 << 20); a.srd(rOut, sOUT, 2 << 20)
    dt = {}
    def dma(st):
        if st >= NS: return
        if 'nok3dma' in KN and st >= 4: dt[st] = dt[3]; return
        ph = st >= 32; s_ = st - 32 if ph else st; slot = (st % R) * 32768
        a.I('s_add_u32', 'm0', S(sM0), hex(slot)); a.I('s_add_u32', S(sT), S(sAh if ph else sAc), hex(s_ * 8192))
        for q in range(2): a.I('buffer_load_dwordx4', V(vL16), S(rH if ph else rC, 4), S(sT), mod=f'offen offset:{q*1024} lds')
        a.I('s_add_u32', 'm0', S(sM0), hex(slot + 16384)); a.I('s_mov_b32', S(sT), hex(s_ * 131072))
        a.I('buffer_load_dwordx4', V(vW1), S(rD if ph else rO, 4), S(sT), mod='offen lds')
        dt[st] = a.I('buffer_load_dwordx4', V(vW2), S(rD if ph else rO, 4), S(sT), mod='offen offset:1024 lds')
    for st in range(R - 1): dma(st)
    for q in range(2): xt = a.I('buffer_load_dwordx2', V(X + 2 * q, 2), V(vX), S(rX, 4), 0, mod=f'offen offset:{q*16}')
    def mm(st, q):
        b = BUF + (st % 2) * 32 + q * 8; d = V(AG if st >= 32 else AS, 16)
        a.I(MF, d, V(b + 4, 4), V(b, 4), 0 if (st in (0, 32) and q == 0) else d)
    for st in range(NS + 1):
        if st < NS:
            a.wvm(dt[st])
        a.wlg(a.lg)
        if st < NS:
            a.I('s_barrier')
            sl = st % R; ra = (0, 0, 16, 16, 18)[sl]; off = (sl & 1) * 32768 if sl < 4 else 0
        for q in range(4):
            if st < NS:
                b = BUF + (st % 2) * 32 + q * 8
                a.I('ds_read_b128', V(b, 4), V(vArd + ra), mod=f'offset:{off + q*1024}')
                a.I('ds_read_b64_tr_b16', V(b + 4, 2), V(vWrd + ra), mod=f'offset:{off + q*2048}')
                a.I('ds_read_b64_tr_b16', V(b + 6, 2), V(vWrd + ra), mod=f'offset:{off + q*2048 + 1024}')
            if st: mm(st - 1, q)
            if q == 0: dma(st + R - 1)
    a.I('s_barrier')
    a.I('s_lshl_b32', S(sT), S(sW), 12); a.I('v_add_u32', V(T), S(sT), V(vL16))
    a.I('s_xor_b32', S(sT), S(sT), 16384); a.I('v_add_u32', V(T + 1), S(sT), V(vL16))
    a.I('s_cmp_eq_u32', S(sKH), 0); a.br('s_cbranch_scc1', 'k3_e0')
    for kh in (1, 0):
        if kh == 0: a.label('k3_e0')
        for n, src in enumerate((AS + 8 * (1 - kh), AS + 8 * (1 - kh) + 4, AG + 8 * (1 - kh), AG + 8 * (1 - kh) + 4)):
            a.I('ds_write_b128', V(T), V(src, 4), mod=f'offset:{n*1024}')
        for i in range(8):
            a.I('v_mov_b32', V(BUF + 16 + i), V(AS + 8 * kh + i)); a.I('v_mov_b32', V(BUF + 24 + i), V(AG + 8 * kh + i))
        if kh == 1: a.br('s_branch', 'k3_e1')
    a.label('k3_e1')
    a.I('s_waitcnt', 'lgkmcnt(0)'); a.lg_done = a.lg; a.I('s_barrier')
    for n in range(4): a.I('ds_read_b128', V(BUF + 4 * n, 4), V(T + 1), mod=f'offset:{n*1024}')
    a.wlg(a.lg)
    Sx, G, E, XF = BUF, BUF + 8, BUF + 32, BUF + 40
    for i in range(16): a.I('v_add_f32', V(BUF + i), V(BUF + i), V(BUF + 16 + i))
    def rnd(r):
        for j in range(4): a.I('v_cvt_pk_bf16_f32', V(T + 2 + j), V(r + 2 * j), V(r + 2 * j + 1))
        for j in range(4):
            a.I('v_lshlrev_b32', V(r + 2 * j), 16, V(T + 2 + j)); a.I('v_and_b32', V(r + 2 * j + 1), '0xffff0000', V(T + 2 + j))
    rnd(Sx); rnd(G)
    for i in range(8): a.I('v_mul_f32', V(E + i), '0xbfb8aa3b', V(G + i))
    for i in range(8): a.I('v_exp_f32', V(E + i), V(E + i))
    for i in range(8): a.I('v_add_f32', V(E + i), 1.0, V(E + i))
    for i in range(8): a.I('v_rcp_f32', V(E + i), V(E + i))
    for i in range(8): a.I('v_mul_f32', V(G + i), V(G + i), V(E + i))
    rnd(G)
    for i in range(8): a.I('v_mul_f32', V(Sx + i), V(Sx + i), V(G + i))
    rnd(Sx)
    a.wvm(xt)
    for j in range(4):
        a.I('v_lshlrev_b32', V(XF + 2 * j), 16, V(X + j)); a.I('v_and_b32', V(XF + 2 * j + 1), '0xffff0000', V(X + j))
    for i in range(8): a.I('v_add_f32', V(Sx + i), V(Sx + i), V(XF + i))
    for j in range(4): a.I('v_cvt_pk_bf16_f32', V(X + j), V(Sx + 2 * j), V(Sx + 2 * j + 1))
    for q in range(2): a.I('buffer_store_dwordx2', V(X + 2 * q, 2), V(vX), S(rOut, 4), 0, mod=f'offen offset:{q*16}')
    tail(a, name)
```

```python
import sys
sys.path.insert(0, 'dev')
from asmlib import *
XN_OFF, KV_OFF, HF_OFF, CTX_OFF = 0, 2 << 20, 36 << 20, 44 << 20
MF = 'v_mfma_f32_32x32x16_bf16'
NAME = 'recurrent_scan__compressed_kv_cla__glu_gated_glu__prompt'
sX, sCKV, sWQ, sWUK, sWUV, sWO, sBX, sWG, sWU, sWD, sOUT, sDBG, sWS = 8, 10, 12, 14, 16, 18, 20, 22, 24, 26, 28, 30, 32

def head(a, name, nwg):
    a.raw(f".globl {name}\n.p2align 8\n.type {name},@function\n{name}:")
    a.I('s_cmp_ge_u32', 's2', nwg); a.br('s_cbranch_scc1', name + '_end')
    a.I('s_load_dwordx16', S(8, 16), S(0, 2), 0)
    a.I('s_load_dwordx8', S(24, 8), S(0, 2), 64)
    a.I('s_load_dwordx2', S(32, 2), S(0, 2), 96)
import os
KN = os.environ.get('KN', '')
def stamp(a, k, kern):
    if 'stamp' + kern in KN: a.I('s_memrealtime' if k in (0, 6) and 'real' in KN else 's_memtime', S(88 + 2 * k, 2))
def stamp_out(a, name, kern, sW):
    if 'stamp' + kern not in KN: return
    stamp(a, 6, kern)
    a.I('s_cmp_eq_u32', 's2', int(os.environ.get('SWG', '0'))); a.br('s_cbranch_scc0', name + '_end')
    a.I('s_cmp_eq_u32', S(sW), int(os.environ.get('SWV', '0'))); a.br('s_cbranch_scc0', name + '_end')
    a.I('s_waitcnt', 'lgkmcnt(0)'); a.srd(4, sDBG, 256)
    for k in range(7):
        a.I('s_sub_u32', S(3), S(88 + 2 * k), S(88)); a.I('v_mov_b32', 'v0', S(3))
        a.I('buffer_store_dword', 'v0', 'off', S(4, 4), 0, mod=f'offset:{4*k}')
def tail(a, name):
    a.label(name + '_end'); a.I('s_endpgm')
def desc(name, nv=256):
    return f""".p2align 6
.amdhsa_kernel {name}
  .amdhsa_next_free_vgpr {nv}
  .amdhsa_next_free_sgpr 102
  .amdhsa_accum_offset {nv}
  .amdhsa_group_segment_fixed_size 0
  .amdhsa_kernarg_size 104
  .amdhsa_user_sgpr_count 2
  .amdhsa_user_sgpr_kernarg_segment_ptr 1
  .amdhsa_system_sgpr_workgroup_id_x 1
.end_amdhsa_kernel
"""
def red64(a, v, t, op='v_add_f32'):
    for m in ('quad_perm:[1,0,3,2]', 'quad_perm:[2,3,0,1]', 'row_half_mirror', 'row_mirror'):
        a.I(op + '_dpp', V(v), V(v), V(v), mod=m + ' row_mask:0xf bank_mask:0xf')
    for sw in ('v_permlane16_swap_b32', 'v_permlane32_swap_b32'):
        a.I('v_mov_b32', V(t), V(v)); a.I(sw, V(t), V(v)); a.I(op, V(v), V(v), V(t))

def lane_w_setup(a, vLane, vWrd, ringbase, T):
    a.I('v_lshrrev_b32', V(T), 5, V(vLane)); a.I('v_lshlrev_b32', V(vWrd), 10, V(T))
    a.I('v_bfe_u32', V(T), V(vLane), 2, 2); a.I('v_lshl_add_u32', V(vWrd), V(T), 6, V(vWrd))
    a.I('v_bfe_u32', V(T), V(vLane), 4, 1); a.I('v_lshl_add_u32', V(vWrd), V(T), 5, V(vWrd))
    a.I('v_and_b32', V(T), 3, V(vLane)); a.I('v_lshl_add_u32', V(vWrd), V(T), 3, V(vWrd))
    a.I('v_add_u32', V(vWrd), hex(ringbase), V(vWrd))
def w_voff(a, vd, vLane, sW, stride, sCol, T, sT):
    a.I('v_bfe_u32', V(T), V(vLane), 2, 3); a.I('s_lshl_b32', S(sT), S(sW), 3)
    a.I('v_add_u32', V(T), S(sT), V(T)); a.I('s_movk_i32', S(sT), stride)
    a.I('v_mul_lo_u32', V(vd), V(T), S(sT))
    a.I('v_lshrrev_b32', V(T), 5, V(vLane)); a.I('v_lshl_add_u32', V(vd), V(T), 6, V(vd))
    a.I('v_and_b32', V(T), 3, V(vLane)); a.I('v_lshl_add_u32', V(vd), V(T), 4, V(vd))
    a.I('v_add_u32', V(vd), S(sCol), V(vd))

class Gemm:
    def __init__(g, a, passes, ACT, ACC, WF, vWrd, sWm0, sT):
        g.__dict__.update(locals()); g.wt = {}; g.ft = {}; g.act_tok = {}
    def dma(g, C):
        a = g.a
        if C >= 8 * len(g.passes): return
        p = g.passes[C // 8]; c = C % 8
        for u in (0, 1):
            a.I('s_add_u32', 'm0', S(g.sWm0), hex((C % 4) * 16384 + u * 8192))
            a.I('s_mov_b32', S(g.sT), hex(c * 64 * p['stride'] + p['uoff'][u]))
            g.wt[C] = a.I('buffer_load_dwordx4', V(p['voff']), S(p['srd'][u], 4), S(g.sT), mod='offen lds')
    def rd(g, t, nb):
        C, ks = divmod(t, 4)
        if C >= 8 * len(g.passes): return
        off = (C % 4) * 16384 + (nb >> 1) * 8192 + ks * 2048 + (nb & 1) * 512
        r = g.WF + (t % 2) * 16 + nb * 4
        g.a.I('ds_read_b64_tr_b16', V(r, 2), V(g.vWrd), mod=f'offset:{off}')
        g.ft[t, nb] = g.a.I('ds_read_b64_tr_b16', V(r + 2, 2), V(g.vWrd), mod=f'offset:{off+256}')
    def run(g, mid_hook=lambda C: None, act_wait=lambda t: None):
        a = g.a; n = 32 * len(g.passes)
        for nb in range(4): g.rd(0, nb)
        for t in range(n):
            C, ks = divmod(t, 4); p = g.passes[C // 8]
            act_wait(t)
            for nb in range(4):
                g.rd(t + 1, nb)
                a.wlg(g.ft[t, nb])
                w = V(g.WF + (t % 2) * 16 + nb * 4, 4); x = V(g.ACT + (t % 32) * 4, 4); d = V(g.ACC + nb * 16, 16)
                A, B = (x, w) if p['swap'] else (w, x)
                a.I(MF, d, A, B, d if t % 32 else 0)
            if ks == 1:
                if C + 1 in g.wt:
                    a.wvm(g.wt[C + 1]); a.I('s_barrier')
                mid_hook(C); g.dma(C + 3)
            if t % 32 == 31: p['epi']()

def pack_store(a, src, T, voff, srd, sO, base, nfr=8):
    for f in range(nfr):
        t = T + (f % 2) * 4
        for j in range(4): a.I('v_cvt_pk_bf16_f32', V(t + j), V(src + f * 8 + 2 * j), V(src + f * 8 + 2 * j + 1))
        if f % 4 == 0: a.I('s_mov_b32', S(sO), hex(base + f * 1024))
        a.I('buffer_store_dwordx4', V(t, 4), V(voff), S(srd, 4), S(sO), mod=f'offen offset:{(f%4)*1024}')

def k1(a):
    name = 'k1_kernel'; head(a, name, 256); stamp(a, 0, '1')
    ACC, ACT, WF = 0, 64, 192
    vLane, vWrd, vWo, vSegE, vSegO, vSA, vKV, T = 224, 225, 226, 227, 228, 229, 233, 236
    sW, sH, sRT, sT, sT2, sWm0, sSm0, sSeg, sTok = 34, 35, 36, 37, 38, 39, 40, 41, 42
    rX, rC, rK, rV, rXN, rKV = 44, 48, 52, 56, 60, 64
    a.I('v_and_b32', V(vLane), 63, 'v0'); a.I('v_lshrrev_b32', V(T), 6, 'v0'); a.I('v_readfirstlane_b32', S(sW), V(T))
    a.I('s_and_b32', S(sH), 's2', 7); a.I('s_lshl_b32', S(sH), S(sH), 2); a.I('s_bfe_u32', S(sT), 's2', '0x20003'); a.I('s_add_u32', S(sH), S(sH), S(sT))
    a.I('s_lshr_b32', S(sRT), 's2', 5)
    a.I('s_lshl_b32', S(sTok), 's2', 3); a.I('s_add_u32', S(sTok), S(sTok), S(sW))
    lane_w_setup(a, vLane, vWrd, 98304, T)
    a.I('s_lshl_b32', S(sT2), S(sH), 8)
    w_voff(a, vWo, vLane, sW, 8192, sT2, T, sT)
    a.I('v_lshrrev_b32', V(T), 3, V(vLane)); a.I('v_lshrrev_b32', V(T + 1), 4, V(vLane)); a.I('v_and_b32', V(T + 2), 7, V(vLane))
    a.I('v_xor_b32', V(T + 1), V(T + 1), V(T + 2)); a.I('v_lshlrev_b32', V(T + 1), 4, V(T + 1))
    a.I('v_lshl_add_u32', V(vSegE), V(T), 10, V(T + 1)); a.I('v_xor_b32', V(vSegO), 64, V(vSegE))
    a.I('s_mul_i32', S(sSm0), S(sW), 12288)
    a.I('v_and_b32', V(T), 31, V(vLane)); a.I('v_bfe_u32', V(T + 1), V(vLane), 1, 3); a.I('v_lshrrev_b32', V(T + 2), 5, V(vLane))
    a.I('v_xor_b32', V(T + 1), V(T + 1), V(T + 2)); a.I('v_lshlrev_b32', V(T + 1), 4, V(T + 1))
    a.I('v_lshl_add_u32', V(T), V(T), 7, V(T + 1)); a.I('v_add_u32', V(vSA), S(sSm0), V(T))
    for k in (1, 2, 3): a.I('v_xor_b32', V(vSA + k), k * 32, V(vSA))
    a.I('s_lshl_b32', S(sWm0), S(sW), 10); a.I('s_add_u32', S(sWm0), S(sWm0), 98304)
    a.I('s_lshl_b32', S(sSeg), S(sRT), 3); a.I('s_add_u32', S(sSeg), S(sSeg), S(sW)); a.I('s_lshl_b32', S(sSeg), S(sSeg), 15)
    a.I('s_lshl_b32', S(sT), S(sH), 20); a.I('s_lshl_b32', S(sT2), S(sRT), 17); a.I('s_add_u32', S(sT), S(sT), S(sT2))
    a.I('s_lshr_b32', S(sT2), S(sW), 1); a.I('s_lshl_b32', S(sT2), S(sT2), 15); a.I('s_add_u32', S(sT), S(sT), S(sT2))
    a.I('s_and_b32', S(sT2), S(sW), 1); a.I('s_lshl_b32', S(sT2), S(sT2), 13); a.I('s_add_u32', S(sT), S(sT), S(sT2))
    a.I('v_lshlrev_b32', V(T + 3), 4, V(vLane)); a.I('v_add_u32', V(vKV), S(sT), V(T + 3))
    a.I('s_waitcnt', 'lgkmcnt(0)')
    a.srd(rX, sX, 2 << 20); a.srd(rC, sCKV, 2 << 20); a.srd(rK, sWUK, 4 << 20); a.srd(rV, sWUV, 4 << 20)
    a.srd(rXN, sWS, 2 << 20, XN_OFF); a.srd(rKV, sWS, 32 << 20, KV_OFF)
    X = T + 4
    a.I('s_lshl_b32', S(sT), S(sTok), 10)
    xt = a.I('buffer_load_dwordx4', V(X, 4), V(T + 3), S(rX, 4), S(sT), mod='offen')
    def epi(kv): return lambda: pack_store(a, ACC, T, vKV, rKV, sT2, kv * 16384)
    g = Gemm(a, [dict(stride=8192, uoff=(0, 128), voff=vWo, srd=(rK, rK), swap=False, epi=epi(0)),
                 dict(stride=8192, uoff=(0, 128), voff=vWo, srd=(rV, rV), swap=True, epi=epi(1))], ACT, ACC, WF, vWrd, sWm0, sT)
    def seg_dma(s):
        if s > 7: return
        for q in range(4):
            a.I('s_add_u32', 'm0', S(sSm0), hex((s % 3) * 4096 + q * 1024))
            a.I('s_add_u32', S(sT), S(sSeg), hex(q * 8192 + s * 128))
            a.I('buffer_load_dwordx4', V(vSegO if q & 1 else vSegE), S(rC, 4), S(sT), mod='offen lds')
    at = {}
    def seg_rd(s):
        if s > 7: return
        for k in range(4): at[4 * s + k] = a.I('ds_read_b128', V(ACT + (4 * s + k) * 4, 4), V(vSA + k), mod=f'offset:{(s%3)*4096}')
    for s in range(3): seg_dma(s); g.dma(s)
    F = 0; Sm = 8; Tm = 9; D = 10; M = 18
    a.wvm(xt)
    for j in range(4):
        a.I('v_lshlrev_b32', V(F + 2 * j), 16, V(X + j)); a.I('v_and_b32', V(F + 2 * j + 1), '0xffff0000', V(X + j))
    a.I('v_add_f32', V(Sm), V(F), V(F + 1))
    for j in range(2, 8): a.I('v_add_f32', V(Sm), V(Sm), V(F + j))
    red64(a, Sm, Tm)
    a.I('v_mul_f32', V(M), '0x3b000000', V(Sm))
    for j in range(8): a.I('v_sub_f32', V(D + j), V(F + j), V(M))
    a.I('v_mul_f32', V(Sm), V(D), V(D))
    for j in range(1, 8): a.I('v_fmac_f32', V(Sm), V(D + j), V(D + j))
    red64(a, Sm, Tm)
    def rbf(r): a.I('v_cvt_pk_bf16_f32', V(r), V(r), V(r)); a.I('v_lshlrev_b32', V(r), 16, V(r))
    a.I('v_mul_f32', V(Sm), '0x3b000000', V(Sm)); rbf(Sm)
    a.I('v_add_f32', V(Sm), '0x3727c5ac', V(Sm)); rbf(Sm)
    a.I('v_sqrt_f32', V(Sm), V(Sm)); rbf(Sm); a.I('v_rcp_f32', V(Sm), V(Sm)); rbf(M)
    for j in range(8): a.I('v_sub_f32', V(D + j), V(F + j), V(M))
    for j in range(4): a.I('v_cvt_pk_bf16_f32', V(X + j), V(D + 2 * j), V(D + 2 * j + 1))
    for j in range(4):
        a.I('v_lshlrev_b32', V(F + 2 * j), 16, V(X + j)); a.I('v_and_b32', V(F + 2 * j + 1), '0xffff0000', V(X + j))
    for j in range(8): a.I('v_mul_f32', V(F + j), V(F + j), V(Sm))
    for j in range(4): a.I('v_cvt_pk_bf16_f32', V(X + j), V(F + 2 * j), V(F + 2 * j + 1))
    a.I('v_lshrrev_b32', V(T), 1, V(vLane)); a.I('v_and_b32', V(T + 1), 1, V(vLane)); a.I('v_lshlrev_b32', V(T + 1), 9, V(T + 1))
    a.I('v_lshl_add_u32', V(T), V(T), 10, V(T + 1))
    a.I('s_lshr_b32', S(sT), S(sTok), 5); a.I('s_lshl_b32', S(sT), S(sT), 15); a.I('s_and_b32', S(sT2), S(sTok), 31)
    a.I('s_lshl_b32', S(sT2), S(sT2), 4); a.I('s_add_u32', S(sT), S(sT), S(sT2))
    a.wvm(g.wt[0])
    a.I('buffer_store_dwordx4', V(X, 4), V(T), S(rXN, 4), S(sT), mod='offen')
    a.I('s_barrier'); stamp(a, 1, '1')
    seg_rd(0)
    def mid(C):
        seg_dma(C + 3) if C < 8 else None
        if C in (3, 7, 11, 15): stamp(a, 2 + C // 4, '1')
    g0 = g.dma
    def dma2(C): g0(C); seg_rd(C - 2) if C - 2 < 8 else None
    g.dma = dma2
    g.run(mid, lambda t: a.wlg(at.get(t)) if t < 32 else None)
    stamp_out(a, name, '1', sW)
    tail(a, name)

def build(kernels, path):
    a = Asm()
    ref = open(f'cdna_kernels/{NAME}.s.ref').read().split('\n')
    hdr = [l for l in ref if l.startswith(';') and '@launch' not in l and 'Override' not in l and 'grid=ceil' not in l]
    for l in hdr: a.raw(l)
    for (fn, nm, lds) in kernels: a.raw(f"; @launch kernel={nm} grid=(256,1,1) block=(512,1,1) lds={lds}")
    a.raw('.amdgcn_target "amdgcn-amd-amdhsa--gfx950"\n.text')
    for (fn, nm, lds) in kernels:
        b = Asm(); fn(b); a.out += b.out; print(nm, b.ninst, 'instructions')
    a.raw('.section .rodata,"a"')
    for (fn, nm, lds) in kernels: a.raw(desc(nm))
    open(path, 'w').write(a.text())
if __name__ == '__main__':
    ks = [(k1, 'k1_kernel', 163840)]
    try:
        from gen2 import k2; ks.append((k2, 'k2_kernel', 163840))
        from gen3 import k3; ks.append((k3, 'k3_kernel', 163840))
    except ImportError as e: print(e)
    build(ks, sys.argv[1] if len(sys.argv) > 1 else f'cdna_kernels/{NAME}.s')
```

```python
from gen import *
import os
KN=os.environ.get('KN','')
def k3(a):
    name = 'k3_kernel'; head(a, name, 256)
    NS, R = 46, 5
    AS, AG, BUF, X = 0, 16, 32, 96
    vLane, vL16, vW1, vW2, vArd, vWrd, vX, T = 100, 101, 102, 103, 104, 105, 107, 108
    sW, sTT, sMT, sT, sT2, sM0, sAc, sAh, sKH, sT3 = range(34, 44)
    rC, rH, rO, rD, rX, rOut = 44, 48, 52, 56, 60, 64
    a.I('v_and_b32', V(vLane), 63, 'v0'); a.I('v_lshrrev_b32', V(T), 6, 'v0'); a.I('v_readfirstlane_b32', S(sW), V(T))
    a.I('s_and_b32', S(sTT), 's2', 7); a.I('s_lshl_b32', S(sTT), S(sTT), 2); a.I('s_lshr_b32', S(sT), 's2', 6); a.I('s_add_u32', S(sTT), S(sTT), S(sT))
    a.I('s_bfe_u32', S(sMT), 's2', '0x30003')
    a.I('v_lshlrev_b32', V(vL16), 4, V(vLane))
    a.I('s_lshr_b32', S(sKH), S(sW), 2)
    a.I('s_lshl_b32', S(sT), S(sTT), 1); a.I('s_add_u32', S(sT), S(sT), S(sKH))
    a.I('s_and_b32', S(sT2), S(sW), 3); a.I('s_lshl_b32', S(sT2), S(sT2), 11)
    a.I('s_lshl_b32', S(sAc), S(sT), 18); a.I('s_add_u32', S(sAc), S(sAc), S(sT2))
    a.I('s_mul_i32', S(sAh), S(sT), 112 * 1024); a.I('s_add_u32', S(sAh), S(sAh), S(sT2))
    a.I('s_lshl_b32', S(sM0), S(sW), 11)
    a.I('s_lshl_b32', S(sT3), S(sW), 1); a.I('s_lshl_b32', S(sT2), S(sMT), 7)
    w_voff(a, vW1, vLane, sT3, 1024, sT2, T, sT); a.I('v_add_u32', V(vW2), 7168, V(vW1))
    a.I('s_and_b32', S(sT), S(sW), 1); a.I('s_lshl_b32', S(sT), S(sT), 13); a.I('s_lshl_b32', S(sT2), S(sKH), 12); a.I('s_add_u32', S(sT), S(sT), S(sT2))
    a.I('v_add_u32', V(vArd), S(sT), V(vL16))
    lane_w_setup(a, vLane, vWrd, 0, T, 9)
    a.I('s_bfe_u32', S(sT), S(sW), '0x10001'); a.I('s_lshl_b32', S(sT), S(sT), 6); a.I('v_xor_b32', V(vWrd), S(sT), V(vWrd))
    a.I('s_lshl_b32', S(sT), S(sKH), 13); a.I('s_add_u32', S(sT), S(sT), 16384); a.I('v_add_u32', V(vWrd), S(sT), V(vWrd))
    a.I('v_add_u32', V(vArd + 16), 65536, V(vArd)); a.I('v_add_u32', V(vWrd + 16), 65536, V(vWrd))
    a.I('v_add_u32', V(vArd + 18), 131072, V(vArd)); a.I('v_add_u32', V(vWrd + 18), 131072, V(vWrd))
    a.I('v_and_b32', V(T), 31, V(vLane)); a.I('v_lshlrev_b32', V(vX), 10, V(T))
    a.I('v_lshrrev_b32', V(T), 5, V(vLane)); a.I('v_lshl_add_u32', V(vX), V(T), 3, V(vX))
    a.I('s_lshl_b32', S(sT), S(sTT), 1); a.I('s_and_b32', S(sT2), S(sW), 1); a.I('s_add_u32', S(sT), S(sT), S(sT2)); a.I('s_lshl_b32', S(sT), S(sT), 15)
    a.I('s_lshl_b32', S(sT2), S(sMT), 7); a.I('s_add_u32', S(sT), S(sT), S(sT2))
    a.I('s_bfe_u32', S(sT2), S(sW), '0x10001'); a.I('s_lshl_b32', S(sT2), S(sT2), 6); a.I('s_add_u32', S(sT), S(sT), S(sT2))
    a.I('s_lshl_b32', S(sT2), S(sKH), 5); a.I('s_add_u32', S(sT), S(sT), S(sT2)); a.I('v_add_u32', V(vX), S(sT), V(vX))
    a.I('s_waitcnt', 'lgkmcnt(0)')
    a.srd(rC, sWS, 16 << 20, CTX_OFF); a.srd(rH, sWS, 64 * 112 * 1024, HF_OFF); a.srd(rO, sWO, 4 << 20); a.srd(rD, sWD, 1792 * 1024)
    a.srd(rX, sX, 2 << 20); a.srd(rOut, sOUT, 2 << 20)
    dt = {}
    def dma(st):
        if st >= NS: return
        if 'nok3dma' in KN and st >= 4: dt[st] = dt[3]; return
        ph = st >= 32; s_ = st - 32 if ph else st; slot = (st % R) * 32768
        a.I('s_add_u32', 'm0', S(sM0), hex(slot)); a.I('s_add_u32', S(sT), S(sAh if ph else sAc), hex(s_ * 8192))
        for q in range(2 if 'k3noa' not in KN else 0): dt[st] = a.I('buffer_load_dwordx4', V(vL16), S(rH if ph else rC, 4), S(sT), mod=f'offen offset:{q*1024} lds')
        if 'k3now' in KN: return
        a.I('s_add_u32', 'm0', S(sM0), hex(slot + 16384)); a.I('s_mov_b32', S(sT), hex(s_ * 131072))
        a.I('buffer_load_dwordx4', V(vW1), S(rD if ph else rO, 4), S(sT), mod='offen lds')
        dt[st] = a.I('buffer_load_dwordx4', V(vW2), S(rD if ph else rO, 4), S(sT), mod='offen offset:1024 lds')
    for st in range(R - 1): dma(st)
    for q in range(2): xt = a.I('buffer_load_dwordx2', V(X + 2 * q, 2), V(vX), S(rX, 4), 0, mod=f'offen offset:{q*16}')
    def mm(st, q):
        b = BUF + (st % 2) * 32 + q * 8; d = V(AG if st >= 32 else AS, 16)
        a.I(MF, d, V(b + 4, 4), V(b, 4), 0 if (st in (0, 32) and q == 0) else d)
    for st in range(NS + 1):
        if st < NS:
            a.wvm(dt[st])
        a.wlg(a.lg)
        if st < NS:
            a.I('s_barrier')
            sl = st % R; ra = (0, 0, 16, 16, 18)[sl]; off = (sl & 1) * 32768 if sl < 4 else 0
        for q in range(4):
            if st < NS:
                b = BUF + (st % 2) * 32 + q * 8
                a.I('ds_read_b128', V(b, 4), V(vArd + ra), mod=f'offset:{off + q*1024}')
                a.I('ds_read_b64_tr_b16', V(b + 4, 2), V(vWrd + ra), mod=f'offset:{off + q*2048}')
                a.I('ds_read_b64_tr_b16', V(b + 6, 2), V(vWrd + ra), mod=f'offset:{off + q*2048 + 1024}')
            if st: mm(st - 1, q)
            if q == 0: dma(st + R - 1)
    a.I('s_barrier')
    a.I('s_lshl_b32', S(sT), S(sW), 12); a.I('v_add_u32', V(T), S(sT), V(vL16))
    a.I('s_xor_b32', S(sT), S(sT), 16384); a.I('v_add_u32', V(T + 1), S(sT), V(vL16))
    a.I('s_cmp_eq_u32', S(sKH), 0); a.br('s_cbranch_scc1', 'k3_e0')
    for kh in (1, 0):
        if kh == 0: a.label('k3_e0')
        for n, src in enumerate((AS + 8 * (1 - kh), AS + 8 * (1 - kh) + 4, AG + 8 * (1 - kh), AG + 8 * (1 - kh) + 4)):
            a.I('ds_write_b128', V(T), V(src, 4), mod=f'offset:{n*1024}')
        for i in range(8):
            a.I('v_mov_b32', V(BUF + 16 + i), V(AS + 8 * kh + i)); a.I('v_mov_b32', V(BUF + 24 + i), V(AG + 8 * kh + i))
        if kh == 1: a.br('s_branch', 'k3_e1')
    a.label('k3_e1')
    a.I('s_waitcnt', 'lgkmcnt(0)'); a.lg_done = a.lg; a.I('s_barrier')
    for n in range(4): a.I('ds_read_b128', V(BUF + 4 * n, 4), V(T + 1), mod=f'offset:{n*1024}')
    a.wlg(a.lg)
    Sx, G, E, XF = BUF, BUF + 8, BUF + 32, BUF + 40
    for i in range(16): a.I('v_add_f32', V(BUF + i), V(BUF + i), V(BUF + 16 + i))
    def rnd(r):
        for j in range(4): a.I('v_cvt_pk_bf16_f32', V(T + 2 + j), V(r + 2 * j), V(r + 2 * j + 1))
        for j in range(4):
            a.I('v_lshlrev_b32', V(r + 2 * j), 16, V(T + 2 + j)); a.I('v_and_b32', V(r + 2 * j + 1), '0xffff0000', V(T + 2 + j))
    rnd(Sx); rnd(G)
    for i in range(8): a.I('v_mul_f32', V(E + i), '0xbfb8aa3b', V(G + i))
    for i in range(8): a.I('v_exp_f32', V(E + i), V(E + i))
    for i in range(8): a.I('v_add_f32', V(E + i), 1.0, V(E + i))
    for i in range(8): a.I('v_rcp_f32', V(E + i), V(E + i))
    for i in range(8): a.I('v_mul_f32', V(G + i), V(G + i), V(E + i))
    rnd(G)
    for i in range(8): a.I('v_mul_f32', V(Sx + i), V(Sx + i), V(G + i))
    rnd(Sx)
    a.wvm(xt)
    for j in range(4):
        a.I('v_lshlrev_b32', V(XF + 2 * j), 16, V(X + j)); a.I('v_and_b32', V(XF + 2 * j + 1), '0xffff0000', V(X + j))
    for i in range(8): a.I('v_add_f32', V(Sx + i), V(Sx + i), V(XF + i))
    for j in range(4): a.I('v_cvt_pk_bf16_f32', V(X + j), V(Sx + 2 * j), V(Sx + 2 * j + 1))
    for q in range(2): a.I('buffer_store_dwordx2', V(X + 2 * q, 2), V(vX), S(rOut, 4), 0, mod=f'offen offset:{q*16}')
    tail(a, name)
```

```python
import sys
sys.path.insert(0, 'dev')
from asmlib import *
XN_OFF, KV_OFF, HF_OFF, CTX_OFF = 0, 2 << 20, 36 << 20, 44 << 20
MF = 'v_mfma_f32_32x32x16_bf16'
NAME = 'recurrent_scan__compressed_kv_cla__glu_gated_glu__prompt'
sX, sCKV, sWQ, sWUK, sWUV, sWO, sBX, sWG, sWU, sWD, sOUT, sDBG, sWS = 8, 10, 12, 14, 16, 18, 20, 22, 24, 26, 28, 30, 32

def head(a, name, nwg):
    a.raw(f".globl {name}\n.p2align 8\n.type {name},@function\n{name}:")
    a.I('s_cmp_ge_u32', 's2', nwg); a.br('s_cbranch_scc1', name + '_end')
    a.I('s_load_dwordx16', S(8, 16), S(0, 2), 0)
    a.I('s_load_dwordx8', S(24, 8), S(0, 2), 64)
    a.I('s_load_dwordx2', S(32, 2), S(0, 2), 96)
import os
KN = os.environ.get('KN', '')
def stamp(a, k, kern):
    if 'stamp' + kern in KN: a.I('s_memrealtime' if k in (0, 6) and 'real' in KN else 's_memtime', S(88 + 2 * k, 2))
def stamp_out(a, name, kern, sW):
    if 'stamp' + kern not in KN: return
    stamp(a, 6, kern)
    a.I('s_cmp_eq_u32', 's2', int(os.environ.get('SWG', '0'))); a.br('s_cbranch_scc0', name + '_end')
    a.I('s_cmp_eq_u32', S(sW), int(os.environ.get('SWV', '0'))); a.br('s_cbranch_scc0', name + '_end')
    a.I('s_waitcnt', 'lgkmcnt(0)'); a.srd(4, sDBG, 256)
    for k in range(7):
        a.I('s_sub_u32', S(3), S(88 + 2 * k), S(88)); a.I('v_mov_b32', 'v0', S(3))
        a.I('buffer_store_dword', 'v0', 'off', S(4, 4), 0, mod=f'offset:{4*k}')
def tail(a, name):
    a.label(name + '_end'); a.I('s_endpgm')
def desc(name, nv=256):
    return f""".p2align 6
.amdhsa_kernel {name}
  .amdhsa_next_free_vgpr {nv}
  .amdhsa_next_free_sgpr 102
  .amdhsa_accum_offset {nv}
  .amdhsa_group_segment_fixed_size 0
  .amdhsa_kernarg_size 104
  .amdhsa_user_sgpr_count 2
  .amdhsa_user_sgpr_kernarg_segment_ptr 1
  .amdhsa_system_sgpr_workgroup_id_x 1
.end_amdhsa_kernel
"""
def red64(a, v, t, op='v_add_f32'):
    for m in ('quad_perm:[1,0,3,2]', 'quad_perm:[2,3,0,1]', 'row_half_mirror', 'row_mirror'):
        a.I(op + '_dpp', V(v), V(v), V(v), mod=m + ' row_mask:0xf bank_mask:0xf')
    for sw in ('v_permlane16_swap_b32', 'v_permlane32_swap_b32'):
        a.I('v_mov_b32', V(t), V(v)); a.I(sw, V(t), V(v)); a.I(op, V(v), V(v), V(t))

def lane_w_setup(a, vLane, vWrd, ringbase, T, hishift=10):
    a.I('v_lshrrev_b32', V(T), 5, V(vLane)); a.I('v_lshlrev_b32', V(vWrd), hishift, V(T))
    a.I('v_bfe_u32', V(T), V(vLane), 2, 2); a.I('v_lshl_add_u32', V(vWrd), V(T), 7, V(vWrd))
    a.I('v_bfe_u32', V(T), V(vLane), 3, 1); a.I('v_lshl_add_u32', V(vWrd), V(T), 6, V(vWrd))
    a.I('v_bfe_u32', V(T), V(vLane), 4, 1); a.I('v_lshl_add_u32', V(vWrd), V(T), 5, V(vWrd))
    a.I('v_and_b32', V(T), 3, V(vLane)); a.I('v_lshl_add_u32', V(vWrd), V(T), 3, V(vWrd))
    if ringbase: a.I('v_add_u32', V(vWrd), hex(ringbase), V(vWrd))
    a.I('v_xor_b32', V(vWrd + 1), 64, V(vWrd))
def w_voff(a, vd, vLane, sW, stride, sCol, T, sT):
    a.I('v_lshrrev_b32', V(T), 3, V(vLane)); a.I('s_lshl_b32', S(sT), S(sW), 3)
    a.I('v_add_u32', V(T), S(sT), V(T)); a.I('s_movk_i32', S(sT), stride)
    a.I('v_mul_lo_u32', V(vd), V(T), S(sT))
    a.I('v_and_b32', V(T), 7, V(vLane)); a.I('v_lshl_add_u32', V(vd), V(T), 4, V(vd))
    a.I('v_bfe_u32', V(T), V(vLane), 4, 1); a.I('v_lshlrev_b32', V(T), 6, V(T)); a.I('v_xor_b32', V(vd), V(vd), V(T))
    a.I('v_add_u32', V(vd), S(sCol), V(vd))

class Gemm:
    def __init__(g, a, passes, ACT, ACC, WF, vWrd, sWm0, sT):
        g.__dict__.update(locals()); g.wt = {}; g.ft = {}; g.act_tok = {}
    def dma(g, C):
        a = g.a
        if C >= 8 * len(g.passes): return
        p = g.passes[C // 8]; c = C % 8
        for u in (0, 1):
            a.I('s_add_u32', 'm0', S(g.sWm0), hex((C % 4) * 16384 + u * 8192))
            a.I('s_mov_b32', S(g.sT), hex(c * 64 * p['stride'] + p['uoff'][u]))
            g.wt[C] = a.I('buffer_load_dwordx4', V(p['voff']), S(p['srd'][u], 4), S(g.sT), mod='offen lds')
    def rd(g, t, nb):
        C, ks = divmod(t, 4)
        if C >= 8 * len(g.passes): return
        off = (C % 4) * 16384 + (nb >> 1) * 8192 + ks * 2048
        r = g.WF + (t % 2) * 16 + nb * 4
        g.a.I('ds_read_b64_tr_b16', V(r, 2), V(g.vWrd + (nb & 1)), mod=f'offset:{off}')
        g.ft[t, nb] = g.a.I('ds_read_b64_tr_b16', V(r + 2, 2), V(g.vWrd + (nb & 1)), mod=f'offset:{off+512}')
    def run(g, mid_hook=lambda C: None, act_wait=lambda t: None):
        a = g.a; n = 32 * len(g.passes)
        for nb in range(4): g.rd(0, nb)
        for t in range(n):
            C, ks = divmod(t, 4); p = g.passes[C // 8]
            act_wait(t)
            for nb in range(4):
                g.rd(t + 1, nb)
                a.wlg(g.ft[t, nb])
                w = V(g.WF + (t % 2) * 16 + nb * 4, 4); x = V(g.ACT + (t % 32) * 4, 4); d = V(g.ACC + nb * 16, 16)
                A, B = (x, w) if p['swap'] else (w, x)
                a.I(MF, d, A, B, d if t % 32 else 0)
            if ks == 1:
                if C + 1 in g.wt:
                    a.wvm(g.wt[C + 1]); a.I('s_barrier')
                mid_hook(C); g.dma(C + 3)
            if t % 32 == 31: p['epi']()

def pack_store(a, src, T, voff, srd, sO, base, nfr=8):
    for f in range(nfr):
        t = T + (f % 2) * 4
        for j in range(4): a.I('v_cvt_pk_bf16_f32', V(t + j), V(src + f * 8 + 2 * j), V(src + f * 8 + 2 * j + 1))
        if f % 4 == 0: a.I('s_mov_b32', S(sO), hex(base + f * 1024))
        a.I('buffer_store_dwordx4', V(t, 4), V(voff), S(srd, 4), S(sO), mod=f'offen offset:{(f%4)*1024}')

def k1(a):
    name = 'k1_kernel'; head(a, name, 256); stamp(a, 0, '1')
    ACC, ACT, WF = 0, 64, 192
    vLane, vWrd, vWo, vSegE, vSegO, vSA, vKV, T = 224, 234, 226, 227, 228, 229, 233, 236
    sW, sH, sRT, sT, sT2, sWm0, sSm0, sSeg, sTok = 34, 35, 36, 37, 38, 39, 40, 41, 42
    rX, rC, rK, rV, rXN, rKV = 44, 48, 52, 56, 60, 64
    a.I('v_and_b32', V(vLane), 63, 'v0'); a.I('v_lshrrev_b32', V(T), 6, 'v0'); a.I('v_readfirstlane_b32', S(sW), V(T))
    a.I('s_and_b32', S(sH), 's2', 7); a.I('s_lshl_b32', S(sH), S(sH), 2); a.I('s_bfe_u32', S(sT), 's2', '0x20003'); a.I('s_add_u32', S(sH), S(sH), S(sT))
    a.I('s_lshr_b32', S(sRT), 's2', 5)
    a.I('s_lshl_b32', S(sTok), 's2', 3); a.I('s_add_u32', S(sTok), S(sTok), S(sW))
    lane_w_setup(a, vLane, vWrd, 98304, T)
    a.I('s_lshl_b32', S(sT2), S(sH), 8)
    w_voff(a, vWo, vLane, sW, 8192, sT2, T, sT)
    a.I('v_lshrrev_b32', V(T), 3, V(vLane)); a.I('v_lshrrev_b32', V(T + 1), 4, V(vLane)); a.I('v_and_b32', V(T + 2), 7, V(vLane))
    a.I('v_xor_b32', V(T + 1), V(T + 1), V(T + 2)); a.I('v_lshlrev_b32', V(T + 1), 4, V(T + 1))
    a.I('v_lshl_add_u32', V(vSegE), V(T), 10, V(T + 1)); a.I('v_xor_b32', V(vSegO), 64, V(vSegE))
    a.I('s_mul_i32', S(sSm0), S(sW), 12288)
    a.I('v_and_b32', V(T), 31, V(vLane)); a.I('v_bfe_u32', V(T + 1), V(vLane), 1, 3); a.I('v_lshrrev_b32', V(T + 2), 5, V(vLane))
    a.I('v_xor_b32', V(T + 1), V(T + 1), V(T + 2)); a.I('v_lshlrev_b32', V(T + 1), 4, V(T + 1))
    a.I('v_lshl_add_u32', V(T), V(T), 7, V(T + 1)); a.I('v_add_u32', V(vSA), S(sSm0), V(T))
    for k in (1, 2, 3): a.I('v_xor_b32', V(vSA + k), k * 32, V(vSA))
    a.I('s_lshl_b32', S(sWm0), S(sW), 10); a.I('s_add_u32', S(sWm0), S(sWm0), 98304)
    a.I('s_lshl_b32', S(sSeg), S(sRT), 3); a.I('s_add_u32', S(sSeg), S(sSeg), S(sW)); a.I('s_lshl_b32', S(sSeg), S(sSeg), 15)
    a.I('s_lshl_b32', S(sT), S(sH), 20); a.I('s_lshl_b32', S(sT2), S(sRT), 17); a.I('s_add_u32', S(sT), S(sT), S(sT2))
    a.I('s_lshr_b32', S(sT2), S(sW), 1); a.I('s_lshl_b32', S(sT2), S(sT2), 15); a.I('s_add_u32', S(sT), S(sT), S(sT2))
    a.I('s_and_b32', S(sT2), S(sW), 1); a.I('s_lshl_b32', S(sT2), S(sT2), 13); a.I('s_add_u32', S(sT), S(sT), S(sT2))
    vL16 = 225; a.I('v_lshlrev_b32', V(vL16), 4, V(vLane)); a.I('v_add_u32', V(vKV), S(sT), V(vL16))
    a.I('s_waitcnt', 'lgkmcnt(0)')
    a.srd(rX, sX, 2 << 20); a.srd(rC, sCKV, 2 << 20); a.srd(rK, sWUK, 4 << 20); a.srd(rV, sWUV, 4 << 20)
    a.srd(rXN, sWS, 2 << 20, XN_OFF); a.srd(rKV, sWS, 32 << 20, KV_OFF)
    X = T + 4
    a.I('s_lshl_b32', S(sT), S(sTok), 10)
    xt = a.I('buffer_load_dwordx4', V(X, 4), V(vL16), S(rX, 4), S(sT), mod='offen')
    def epi(kv): return lambda: pack_store(a, ACC, T, vKV, rKV, sT2, kv * 16384)
    g = Gemm(a, [dict(stride=8192, uoff=(0, 128), voff=vWo, srd=(rK, rK), swap=False, epi=epi(0)),
                 dict(stride=8192, uoff=(0, 128), voff=vWo, srd=(rV, rV), swap=True, epi=epi(1))], ACT, ACC, WF, vWrd, sWm0, sT)
    def seg_dma(s):
        if s > 7: return
        for q in range(4):
            a.I('s_add_u32', 'm0', S(sSm0), hex((s % 3) * 4096 + q * 1024))
            a.I('s_add_u32', S(sT), S(sSeg), hex(q * 8192 + s * 128))
            a.I('buffer_load_dwordx4', V(vSegO if q & 1 else vSegE), S(rC, 4), S(sT), mod='offen lds')
    at = {}
    def seg_rd(s):
        if s > 7: return
        for k in range(4): at[4 * s + k] = a.I('ds_read_b128', V(ACT + (4 * s + k) * 4, 4), V(vSA + k), mod=f'offset:{(s%3)*4096}')
    for s in range(3): seg_dma(s); g.dma(s)
    F = 0; Sm = 8; Tm = 9; D = 10; M = 18
    a.wvm(xt)
    for j in range(4):
        a.I('v_lshlrev_b32', V(F + 2 * j), 16, V(X + j)); a.I('v_and_b32', V(F + 2 * j + 1), '0xffff0000', V(X + j))
    a.I('v_add_f32', V(Sm), V(F), V(F + 1))
    for j in range(2, 8): a.I('v_add_f32', V(Sm), V(Sm), V(F + j))
    red64(a, Sm, Tm)
    a.I('v_mul_f32', V(M), '0x3b000000', V(Sm))
    for j in range(8): a.I('v_sub_f32', V(D + j), V(F + j), V(M))
    a.I('v_mul_f32', V(Sm), V(D), V(D))
    for j in range(1, 8): a.I('v_fmac_f32', V(Sm), V(D + j), V(D + j))
    red64(a, Sm, Tm)
    def rbf(r): a.I('v_cvt_pk_bf16_f32', V(r), V(r), V(r)); a.I('v_lshlrev_b32', V(r), 16, V(r))
    a.I('v_mul_f32', V(Sm), '0x3b000000', V(Sm)); rbf(Sm)
    a.I('v_add_f32', V(Sm), '0x3727c5ac', V(Sm)); rbf(Sm)
    a.I('v_sqrt_f32', V(Sm), V(Sm)); rbf(Sm); a.I('v_rcp_f32', V(Sm), V(Sm)); rbf(M)
    for j in range(8): a.I('v_sub_f32', V(D + j), V(F + j), V(M))
    for j in range(4): a.I('v_cvt_pk_bf16_f32', V(X + j), V(D + 2 * j), V(D + 2 * j + 1))
    for j in range(4):
        a.I('v_lshlrev_b32', V(F + 2 * j), 16, V(X + j)); a.I('v_and_b32', V(F + 2 * j + 1), '0xffff0000', V(X + j))
    for j in range(8): a.I('v_mul_f32', V(F + j), V(F + j), V(Sm))
    for j in range(4): a.I('v_cvt_pk_bf16_f32', V(X + j), V(F + 2 * j), V(F + 2 * j + 1))
    a.I('v_lshrrev_b32', V(T), 1, V(vLane)); a.I('v_and_b32', V(T + 1), 1, V(vLane)); a.I('v_lshlrev_b32', V(T + 1), 9, V(T + 1))
    a.I('v_lshl_add_u32', V(T), V(T), 10, V(T + 1))
    a.I('s_lshr_b32', S(sT), S(sTok), 5); a.I('s_lshl_b32', S(sT), S(sT), 15); a.I('s_and_b32', S(sT2), S(sTok), 31)
    a.I('s_lshl_b32', S(sT2), S(sT2), 4); a.I('s_add_u32', S(sT), S(sT), S(sT2))
    a.wvm(g.wt[0])
    a.I('buffer_store_dwordx4', V(X, 4), V(T), S(rXN, 4), S(sT), mod='offen')
    a.I('s_barrier'); stamp(a, 1, '1')
    seg_rd(0)
    PF = {5: (sWG, 512 * 3584), 6: (sWU, 512 * 3584), 7: (sWQ, 4 << 20), 8: (sWO, 4 << 20), 9: (sWD, 1792 * 1024)}; rPF = 68
    def mid(C):
        seg_dma(C + 3) if C < 8 else None
        if C in (3, 7, 11, 15): stamp(a, 2 + C // 4, '1')
        if C in PF and 'nopf' not in KN:
            ptr, nb = PF[C]; big = nb == 4 << 20
            a.srd(rPF, ptr, nb); a.I('s_lshl_b32', S(sT2), S(sTok), 11 if big else 10)
            for q in range(2 if big else 1): a.I('buffer_load_dwordx4', V(T + 12, 4), V(vL16), S(rPF, 4), S(sT2), mod=f'offen offset:{q*1024}')
    g0 = g.dma
    def dma2(C): g0(C); seg_rd(C - 2) if C - 2 < 8 else None
    g.dma = dma2
    g.run(mid, lambda t: a.wlg(at.get(t)) if t < 32 else None)
    stamp_out(a, name, '1', sW)
    tail(a, name)

def build(kernels, path):
    a = Asm()
    ref = open(f'cdna_kernels/{NAME}.s.ref').read().split('\n')
    hdr = [l for l in ref if l.startswith(';') and '@launch' not in l and 'Override' not in l and 'grid=ceil' not in l]
    for l in hdr: a.raw(l)
    for (fn, nm, lds) in kernels: a.raw(f"; @launch kernel={nm} grid=(256,1,1) block=(512,1,1) lds={lds}")
    a.raw('.amdgcn_target "amdgcn-amd-amdhsa--gfx950"\n.text')
    for (fn, nm, lds) in kernels:
        b = Asm(); fn(b); a.out += b.out; print(nm, b.ninst, 'instructions')
    a.raw('.section .rodata,"a"')
    for (fn, nm, lds) in kernels: a.raw(desc(nm))
    open(path, 'w').write(a.text())
if __name__ == '__main__':
    ks = [(k1, 'k1_kernel', 163840)]
    try:
        from gen2 import k2; ks.append((k2, 'k2_kernel', 163840))
        from gen3 import k3; ks.append((k3, 'k3_kernel', 163840))
    except ImportError as e: print(e)
    build(ks, sys.argv[1] if len(sys.argv) > 1 else f'cdna_kernels/{NAME}.s')
```

```python
from gen import *
import os
KN=os.environ.get('KN','')
def k2(a):
    name = 'k2_kernel'; head(a, name, 256); stamp(a, 0, '2'); stamp(a, 0, '2s'); tl_start(a, '2')
    ACC, ACT, WF = 0, 64, 192
    O, S0, S1, E, P0, P1, Q, NEGM, FR = 0, 64, 80, 96, 112, 120, 128, 160, 176
    vLane, vWrd, vWq, vWg, vL16, vKrd, vVrd, vD, vNinf, vL, vBs, vA, vB, T = 224, 237, 226, 227, 228, 229, 230, 231, 232, 233, 234, 235, 236, 240
    sW, sH, sI, sT, sT2, sWm0, sTB, sG, sWp, sNA, sU, sRem, sKm0, sVm0, sKVb, sThr, sLow, sSeg, sTBo, sVs, sRown, sRpar = range(34, 56); sKo, sVo = 58, 59; RTD, vB2 = 208, 220
    rXN, rQ, rG, rU, rKV, rH, rCTX = 60, 64, 68, 72, 76, 80, 84
    a.I('v_and_b32', V(vLane), 63, 'v0'); a.I('v_lshrrev_b32', V(T), 6, 'v0'); a.I('v_readfirstlane_b32', S(sW), V(T))
    a.I('s_and_b32', S(sH), 's2', 7); a.I('s_lshl_b32', S(sH), S(sH), 2); a.I('s_bfe_u32', S(sT), 's2', '0x20003'); a.I('s_add_u32', S(sH), S(sH), S(sT))
    a.I('s_lshr_b32', S(sI), 's2', 5)
    a.I('s_lshr_b32', S(sG), S(sW), 2); a.I('s_and_b32', S(sWp), S(sW), 3)
    a.I('s_sub_u32', S(sNA), 16, S(sI))
    a.I('s_sub_u32', S(sT), 15, S(sI)); a.I('s_cmp_eq_u32', S(sG), 0); a.I('s_cselect_b32', S(sTB), S(sT), S(sI))
    a.I('s_lshl_b32', S(sTB), S(sTB), 2); a.I('s_add_u32', S(sTB), S(sTB), S(sWp))
    a.I('s_lshl_b32', S(sTBo), S(sT), 2); a.I('s_add_u32', S(sTBo), S(sTBo), S(sWp))
    lane_w_setup(a, vLane, vWrd, 65536, T)
    a.I('s_lshl_b32', S(sT2), S(sH), 8); w_voff(a, vWq, vLane, sW, 8192, sT2, T, sT)
    a.I('s_min_u32', S(sU), S(sH), 27); a.I('s_lshl_b32', S(sT2), S(sU), 7); w_voff(a, vWg, vLane, sW, 3584, sT2, T, sT)
    a.I('v_lshlrev_b32', V(vL16), 4, V(vLane))
    a.I('s_lshl_b32', S(sWm0), S(sW), 10); a.I('s_add_u32', S(sWm0), S(sWm0), 65536)
    stamp(a, 1, '2s'); a.I('s_waitcnt', 'lgkmcnt(0)'); stamp(a, 2, '2s')
    a.srd(rXN, sWS, 2 << 20, XN_OFF); a.srd(rQ, sWQ, 4 << 20); a.srd(rG, sWG, 512 * 3584); a.srd(rU, sWU, 512 * 3584)
    a.srd(rKV, sWS, 32 << 20, KV_OFF); a.srd(rH, sWS, 64 * 112 * 1024, HF_OFF); a.srd(rCTX, sWS, 16 << 20, CTX_OFF)
    def epi_h():
        for i in range(32):
            a.I('v_mul_f32', V(ACC + i), '0xbfb8aa3b', V(ACC + i))
            a.I('v_exp_f32', V(ACC + i), V(ACC + i))
            if i: a.I('v_add_f32', V(ACC + i - 1), 1.0, V(ACC + i - 1)); a.I('v_rcp_f32', V(ACC + i - 1), V(ACC + i - 1))
            if i > 1: a.I('v_mul_f32', V(ACC + i - 2), V(ACC + i - 2), V(ACC + 32 + i - 2))
        a.I('v_add_f32', V(ACC + 31), 1.0, V(ACC + 31)); a.I('v_rcp_f32', V(ACC + 31), V(ACC + 31))
        for i in (30, 31): a.I('v_mul_f32', V(ACC + i), V(ACC + i), V(ACC + 32 + i))
        a.I('s_mul_i32', S(sT2), S(sTB), 112 * 1024); a.I('s_lshl_b32', S(sU), S(sU), 12); a.I('s_add_u32', S(sT2), S(sT2), S(sU))
        a.I('v_add_u32', V(vA), S(sT2), V(vL16))
        pack_store(a, ACC, T, vA, rH, sT2, 0, 4)
    g = Gemm(a, [dict(stride=3584, uoff=(0, 0), voff=vWg, srd=(rG, rU), swap=False, epi=epi_h),
                 dict(stride=8192, uoff=(0, 128), voff=vWq, srd=(rQ, rQ), swap=False, epi=lambda: None)], ACT, ACC, WF, vWrd, sWm0, sT, sI)
    at = {}
    a.I('s_lshl_b32', S(sSeg), S(sTB), 15)
    def ld_act(k0, k1):
        def f(k):
            if k % 4 == 0: rotc(a, sVo, sI, k // 4); a.I('s_lshl_b32', S(sVo), S(sVo), 12); a.I('s_add_u32', S(sVo), S(sVo), S(sSeg))
            at[k] = a.I('buffer_load_dwordx4', V(ACT + 4 * k, 4), V(vL16), S(rXN, 4), S(sVo), mod=f'offen offset:{(k%4)*1024}')
        for k in range(k0, min(k1, 32)): g.put(lambda k=k: f(k))
    NI = int(os.environ.get('NI', '2'))
    for c in range(NI): g.dma(c); ld_act(4 * c, 4 * c + 4)
    a.I('s_lshl_b32', S(sKVb), S(sH), 20); a.I('s_lshl_b32', S(sT), S(sG), 15); a.I('s_add_u32', S(sKVb), S(sKVb), S(sT))
    a.I('s_lshl_b32', S(sKm0), S(sWp), 11); a.I('s_add_u32', S(sKVb), S(sKVb), S(sKm0))
    a.I('s_lshl_b32', S(sT), S(sG), 14); a.I('s_add_u32', S(sKm0), S(sKm0), S(sT)); a.I('s_add_u32', S(sVm0), S(sKm0), 65536)
    a.I('v_add_u32', V(vKrd), S(sT), V(vL16)); a.I('v_add_u32', V(vVrd), 98304, V(vKrd)); a.I('v_add_u32', V(vKrd), 32768, V(vKrd))
    a.I('v_and_b32', V(vD), 31, V(vLane)); a.I('v_lshrrev_b32', V(T), 5, V(vLane)); a.I('v_lshlrev_b32', V(T), 2, V(T)); a.I('v_sub_u32', V(vD), V(vD), V(T))
    a.I('s_lshl_b32', S(sT), S(sWp), 5); a.I('s_lshl_b32', S(sT2), S(sG), 6); a.I('s_sub_u32', S(sT), S(sT), S(sT2)); a.I('v_add_u32', V(vD), S(sT), V(vD))
    a.I('v_mov_b32', V(vNinf), '0xff800000')
    def kv_half(sm0, soff, b):
        g0 = [('s_add_u32', 'm0', S(sm0), b * 8192)]
        if b: g0.append(('s_add_u32', S(soff), S(soff), 8192))
        ld = lambda q: ('buffer_load_dwordx4', V(vL16), S(rKV, 4), S(soff), f'offen offset:{q*1024} lds')
        return [g0 + [ld(0)], [ld(1)]]
    def emit(grp):
        for x in grp:
            if x[0].startswith('buffer'):
                if 'nokv' not in KN: a.I(*x[:-1], mod=x[-1])
            else: a.I(*x)
    def kv_dma(sm0, soff):
        for b in (0, 1):
            gs = kv_half(sm0, soff, b)
            if b: gs[1].append(('s_xor_b32', S(sm0), S(sm0), 32768))
            for grp in gs: g.put(lambda grp=grp: emit(grp))
    def mid(C):
        if C == 8: stamp(a, 2, '2')
        ld_act(4 * C + 12, 4 * C + 16)
        if C == 10: a.I('s_mov_b32', S(sVo), S(sKVb)); kv_dma(sKm0, sVo)
        if C == 12: a.I('s_add_u32', S(sVo), S(sKVb), 65536); kv_dma(sKm0, sVo)
    stamp(a, 3, '2s'); a.wvm(g.wt[0]); stamp(a, 4, '2s'); a.I('s_barrier'); stamp(a, 1, '2'); stamp(a, 5, '2s')
    if 'stamp2s' in KN: a.wall(); stamp_out(a, name, '2s', sW); a.br('s_branch', name + '_end')
    for c in range(NI, 3): g.dma(c); ld_act(4 * c, 4 * c + 4)
    g.run(mid, lambda t: a.wvm(at.get(t)) if t < 32 else None)
    a.I('s_barrier'); g.defer = False; assert not g.q
    a.I('s_add_u32', S(sT2), S(sKVb), 16384); kv_dma(sVm0, sT2)
    a.srd(rG, sWO, 4 << 20); a.srd(rU, sWD, 1792 * 1024)
    a.I('s_lshl_b32', S(sRown), 's2', 3); a.I('s_add_u32', S(sRown), S(sRown), S(sW)); a.I('s_min_u32', S(sRpar), S(sRown), 1791)
    a.I('s_lshl_b32', S(sT2), S(sRown), 11)
    for q in range(2): a.I('buffer_load_dwordx4', V(RTD + 4 * q, 4), V(vL16), S(rG, 4), S(sT2), mod=f'offen offset:{q*1024}')
    a.I('s_lshl_b32', S(sT2), S(sRpar), 10)
    a.I('buffer_load_dwordx4', V(RTD + 8, 4), V(vL16), S(rU, 4), S(sT2), mod='offen')
    a.I('s_lshl_b32', S(sT), S(sW), 13); a.I('s_add_u32', S(sT), S(sT), 98304); a.I('v_add_u32', V(vA), S(sT), V(vL16))
    a.I('s_mov_b32', S(sT2), '0x3e0293ee')
    for f in range(8):
        for j in range(8): a.I('v_mul_f32', V(ACC + 8 * f + j), S(sT2), V(ACC + 8 * f + j))
        for j in range(4): a.I('v_cvt_pk_bf16_f32', V(Q + 4 * f + j), V(ACC + 8 * f + 2 * j), V(ACC + 8 * f + 2 * j + 1))
        a.I('ds_write_b128', V(vA), V(Q + 4 * f, 4), mod=f'offset:{f*1024}')
    a.I('s_lshl_b32', S(sT), S(sWp), 13); a.I('s_add_u32', S(sT), S(sT), 98304); a.I('v_add_u32', V(vA), S(sT), V(vL16))
    a.wvm(a.vm - 11)
    a.wlg(a.lg); a.I('s_barrier')
    for f in range(8): a.I('ds_read_b128', V(Q + 4 * f, 4), V(vA), mod=f'offset:{f*1024}')
    a.I('s_mov_b32', S(sU), 0); a.I('s_sub_u32', S(sRem), S(sNA), 1); a.I('s_mov_b32', S(sSeg), 0)
    a.I('s_mov_b32', S(sVs), 98304); a.I('s_add_u32', S(sKo), S(sKVb), 65536 + 8192)
    ool = []
    cnt = [0]
    ft = {}
    def frag_rd(slot, src):
        kind, blk, f = src
        if blk == 0 and f == 0:
            if kind == 'K': a.I('v_xor_b32', V(vKrd), 32768, V(vKrd))
            else: a.I('v_xor_b32', V(vVrd), 32768, V(vVrd)); a.I('s_xor_b32', S(sVs), S(sVs), 32768)
        if 'nofrag' in KN or ('novfrag' in KN and kind == 'V'): ft[slot] = None; return
        ft[slot] = a.I('ds_read_b128', V(FR + (slot % 8) * 4, 4), V(vKrd if kind == 'K' else vVrd), mod=f'offset:{blk*8192+f*1024}')
    pend = []; gap = [0]; DS = int(os.environ.get('DS', '4'))
    def section(items, nxt, bar, pre):
        nonlocal pend
        srcs = []
        for (c, A_, b) in items:
            if c is not None: srcs += [('V', c, f) for f in range(8)]
            if A_ is not None: srcs += [('K', A_, f) for f in range(8)]
        n = len(srcs); D = int(os.environ.get('FD', '7')); BP = int(os.environ.get('BP', '3'))
        allsrc = srcs + nxt
        issued = pre
        def fetch(upto):
            nonlocal issued
            while issued < min(upto, len(allsrc)): frag_rd(issued, allsrc[issued]); issued += 1
        slot = 0
        for (c, A_, b) in items:
            nsl = 8 * ((c is not None) + (A_ is not None))
            val = []
            if b is not None:
                Sx = (S0, S1)[b]; Px = (P0, P1)[b]
                for j in range(9):
                    if j < 8:
                        val.append((8, ('v_exp_f32', V(E + 2 * j), V(Sx + 2 * j)))); val.append((8, ('v_exp_f32', V(E + 2 * j + 1), V(Sx + 2 * j + 1))))
                    if j:
                        k = j - 1
                        val.append((4, ('v_cvt_pk_bf16_f32', V(Px + k), V(E + 2 * k), V(E + 2 * k + 1))))
                        if 'pk' not in KN.split(','):
                            if k == 0: val.append((4, ('v_add_f32', V(vBs), V(E), V(E + 1))))
                            else:
                                val.append((4, ('v_add_f32', V(E + 2 * k), V(E + 2 * k), V(E + 2 * k + 1))))
                                val.append((4, ('v_add_f32', V(vBs), V(vBs), V(E + 2 * k))))
                        elif k == 1: val.append((4, ('v_pk_add_f32', V(vB2, 2), V(E, 2), V(E + 2, 2))))
                        elif k: val.append((4, ('v_pk_add_f32', V(vB2, 2), V(vB2, 2), V(E + 2 * k, 2))))
                if 'pk' in KN.split(','): val.append((4, ('v_add_f32', V(vBs), V(vB2), V(vB2 + 1))))
                val.append((4, ('v_cmp_lt_f32', 'vcc', S(sThr), V(vBs))))
            if 'noval' in KN: val = val[-1:]
            if 'noexp' in KN: val = [(w, (('v_mov_b32',) + x[1:]) if x[0] == 'v_exp_f32' else x) for (w, x) in val]
            if 'onlyexp' in KN: val = [(w, x) for (w, x) in val if x[0] in ('v_exp_f32', 'v_cmp_lt_f32')]
            tot = sum(x[0] for x in val); done = 0; vi = 0
            for k in range(nsl):
                fetch(slot + D)
                a.wlg(ft[slot])
                kind, blk, f = srcs[slot]; fr = V(FR + (slot % 8) * 4, 4)
                if kind == 'V':
                    d = V(O + (f >> 1) * 16, 16); a.I(MF, d, fr, V((P0, P1)[blk] + (f & 1) * 4, 4), d)
                else:
                    Sx_ = (S0, S1)[blk]; d = V(Sx_, 16)
                    if f == 0:
                        cnt[0] += 1; id_ = cnt[0]
                        a.I('s_cmp_eq_u32', S(sRem), 0); a.br('s_cbranch_scc1', f'k2_mask{id_}', drain=False)
                        a.I(MF, d, fr, V(Q, 4), V(NEGM, 16)); a.label(f'k2_mback{id_}')
                        def mk(id_=id_, Sx_=Sx_, blk=blk, fr=fr):
                            a.label(f'k2_mask{id_}', pad=16)
                            for i in range(16):
                                a.I('v_cmp_gt_i32', S(56, 2), 8 * (i // 4) + i % 4 + 32 * blk, V(vD))
                                a.I('v_cndmask_b32', V(Sx_ + i), V(NEGM + i), V(vNinf), S(56, 2))
                            a.I(MF, V(Sx_, 16), fr, V(Q, 4), V(Sx_, 16)); a.br('s_branch', f'k2_mback{id_}', drain=False)
                        ool.append(mk)
                    else: a.I(MF, d, fr, V(Q + 4 * f, 4), d)
                slot += 1
                gap[0] += 1
                if pend and gap[0] >= (DS if nsl == 16 else DS // 2): emit(pend.pop(0)); gap[0] = 0
                if bar and k == nsl - 1 - BP:
                    while pend: emit(pend.pop(0))
                    a.wlg(ft[slot + BP - 1]); a.wvm_n(0 if (c is None and A_ == 0) else 4); a.I('s_barrier')
                    pend += unitdma(A_); emit(pend.pop(0)); gap[0] = 0
                while vi < len(val) and done < tot * (k + 1) / nsl - 1e-9:
                    a.I(*val[vi][1]); done += val[vi][0]; vi += 1
            if b is not None:
                cnt[0] += 1; id_ = cnt[0]
                a.br('s_cbranch_vccnz', f'k2_slow{id_}', drain=False); a.label(f'k2_sback{id_}')
                a.I('v_add_f32', V(vL), V(vL), V(vBs))
                def sl(id_=id_, Sx=Sx, Px=Px, So=(S0, S1)[1 - b] if A_ is not None else None):
                    a.label(f'k2_slow{id_}', pad=16)
                    a.I('v_max3_f32', V(vA), V(Sx), V(Sx + 1), V(Sx + 2))
                    for i in range(3, 15, 2): a.I('v_max3_f32', V(vA), V(vA), V(Sx + i), V(Sx + i + 1))
                    a.I('v_max_f32', V(vA), V(vA), V(Sx + 15))
                    a.I('v_mov_b32', V(vB), V(vA)); a.I('v_permlane32_swap_b32', V(vB), V(vA)); a.I('v_max_f32', V(vA), V(vA), V(vB))
                    a.I('v_max_f32', V(vA), S(sLow), V(vA))
                    a.I('v_max_f32', V(vB), 0, V(vA)); a.I('v_exp_f32', V(vB), '-' + V(vB))
                    for i in range(16): a.I('v_sub_f32', V(NEGM + i), V(NEGM + i), V(vA))
                    if So is not None:
                        for i in range(16): a.I('v_sub_f32', V(So + i), V(So + i), V(vA))
                    for i in range(64): a.I('v_mul_f32', V(O + i), V(O + i), V(vB))
                    a.I('v_mul_f32', V(vL), V(vL), V(vB))
                    for i in range(16): a.I('v_sub_f32', V(E + i), V(Sx + i), V(vA))
                    for i in range(16): a.I('v_exp_f32', V(E + i), V(E + i))
                    for k in range(8): a.I('v_cvt_pk_bf16_f32', V(Px + k), V(E + 2 * k), V(E + 2 * k + 1))
                    a.I('v_add_f32', V(vBs), V(E), V(E + 1))
                    for i in range(2, 16): a.I('v_add_f32', V(vBs), V(vBs), V(E + i))
                    a.I('s_mov_b32', S(sThr), '0x53800000'); a.I('s_mov_b32', S(sLow), 0)
                    a.br('s_branch', f'k2_sback{id_}')
                ool.append(sl)
        k = issued - n
        for q in range(k): ft[q] = ft[n + q]
        return k
    def unitdma(b):
        gv = kv_half(sVm0, sVo, b); gk = kv_half(sKm0, sKo, b)
        if b == 0:
            gv[0] = [('s_add_u32', S(sVo), S(sKo), 16384 - 8192)] + gv[0]
            gv[1] += [('s_add_u32', S(sT), S(sU), 2), ('s_min_u32', S(sT), S(sT), 16), ('s_cmp_ge_u32', S(sT), S(sNA)), ('s_cselect_b32', S(sT2), S(sNA), 0),
                      ('s_sub_u32', S(sT), S(sT), S(sT2)), ('s_lshl_b32', S(sT), S(sT), 16), ('s_add_u32', S(sKo), S(sT), S(sKVb))]
        else:
            gk[1] += [('s_xor_b32', S(sVm0), S(sVm0), 32768), ('s_xor_b32', S(sKm0), S(sKm0), 32768), ('s_add_u32', S(sU), S(sU), 1)]
        return gv + gk
    V0 = [('V', 0, f) for f in range(8)]
    if 'noatt' in KN: a.wall(); a.br('s_branch', 'k2_fin')
    stamp(a, 3, '2'); a.drain()
    a.label('k2_seg')
    for i in range(64): a.I('v_mov_b32', V(O + i), 0)
    for i in range(16): a.I('v_mov_b32', V(NEGM + i), 0)
    a.I('v_mov_b32', V(vL), 0); a.I('s_mov_b32', S(sThr), '0xbf800000'); a.I('s_mov_b32', S(sLow), '0xf149f2ca')
    pre = section([(None, 0, None), (None, 1, 0)], V0, True, 0)
    a.I('s_cmp_eq_u32', S(sRem), 0); a.br('s_cbranch_scc1', 'k2_tail', drain=False)
    n1 = len(pend)
    a.label('k2_loop'); a.restamp(4)
    a.I('s_sub_u32', S(sRem), S(sRem), 1)
    section([(0, 0, 1), (1, 1, 0)], V0, True, pre)
    while len(pend) > n1: emit(pend.pop(0))
    assert len(pend) == n1
    a.I('s_cmp_lg_u32', S(sRem), 0); a.br('s_cbranch_scc1', 'k2_loop', drain=False)
    a.label('k2_tail'); stamp(a, 5, '2')
    section([(0, None, 1), (1, None, None)], [], False, pre)
    assert not pend
    a.I('s_lshl_b32', S(sT), S(sWp), 13); a.I('s_add_u32', S(sT2), S(sT), 131072); a.I('v_add_u32', V(vA), S(sT2), V(vL16))
    for f in range(8): a.I('ds_read_b128', V(Q + 4 * f, 4), V(vA), mod=f'offset:{f*1024}')
    a.I('s_add_u32', S(sT), S(sT), S(sVs))
    a.I('s_cmp_eq_u32', S(sG), 0); a.I('s_cselect_b32', S(sRown), S(sT), S(sT2)); a.I('s_cselect_b32', S(sRpar), S(sT2), S(sT))
    a.I('v_mov_b32', V(vB), V(vL)); a.I('v_permlane32_swap_b32', V(vB), V(vL)); a.I('v_add_f32', V(vL), V(vL), V(vB))
    a.I('v_cmp_gt_u32', 'vcc', 32, V(vLane)); a.I('v_cndmask_b32', V(vB), V(vL), V(NEGM))
    a.I('v_lshlrev_b32', V(T), 2, V(vLane)); a.I('v_add_u32', V(T + 1), S(sRpar), V(T))
    a.I('v_and_b32', V(T), 127, V(T)); a.I('v_add_u32', V(T + 2), S(sRown), V(T))
    a.wlg(a.lg); a.I('s_barrier')
    a.I('ds_write_b32', V(T + 1), V(vB)); a.wlg(a.lg); a.I('s_barrier')
    a.I('ds_read_b32', V(T + 3), V(T + 2)); a.I('ds_read_b32', V(T + 4), V(T + 2), mod='offset:128')
    a.I('v_add_u32', V(T + 1), S(sRown), V(vL16)); a.I('v_add_u32', V(T + 2), S(sRpar), V(vL16))
    a.I('s_lshl_b32', S(sT), S(sTBo), 18); a.I('s_lshl_b32', S(sT2), S(sH), 13); a.I('s_add_u32', S(sT), S(sT), S(sT2))
    a.I('s_lshl_b32', S(sT2), S(sG), 12); a.I('s_add_u32', S(sT), S(sT), S(sT2)); a.I('v_add_u32', V(vA), S(sT), V(vL16))
    a.wlg(a.lg)
    a.wvm_n(0)
    a.I('s_cmp_eq_u32', S(sG), 0); a.br('s_cbranch_scc1', 'k2_m0')
    for gi in (1, 0):
        if gi == 0: a.label('k2_m0')
        keep = O + 32 * gi; send = O + 32 * (1 - gi)
        for q in range(8): a.I('ds_write_b128', V(T + 1), V(send + 4 * q, 4), mod=f'offset:{q*1024}')
        a.I('v_min_f32', V(T + 5), V(T + 3), V(NEGM))
        a.I('v_sub_f32', V(T + 6), V(T + 5), V(NEGM)); a.I('v_exp_f32', V(T + 6), V(T + 6))
        a.I('v_sub_f32', V(T + 7), V(T + 5), V(T + 3)); a.I('v_exp_f32', V(T + 7), V(T + 7))
        a.I('v_mul_f32', V(T + 5), V(vL), V(T + 6)); a.I('v_fmac_f32', V(T + 5), V(T + 4), V(T + 7)); a.I('v_rcp_f32', V(T + 5), V(T + 5))
        a.I('v_mul_f32', V(T + 6), V(T + 6), V(T + 5)); a.I('v_mul_f32', V(T + 7), V(T + 7), V(T + 5))
        a.wlg(a.lg); a.I('s_barrier')
        tk = [a.I('ds_read_b128', V(S0 + 4 * q, 4), V(T + 2), mod=f'offset:{q*1024}') for q in range(8)]
        for i in range(32): a.I('v_mul_f32', V(keep + i), V(keep + i), V(T + 6))
        for i in range(32):
            a.wlg(tk[i // 4]); a.I('v_fmac_f32', V(keep + i), V(S0 + i), V(T + 7))
        pack_store(a, keep, T + 8, vA, rCTX, sT2, 0, 4)
        if gi == 1: a.br('s_branch', 'k2_mdone')
    a.label('k2_mdone')
    a.I('s_cmp_lg_u32', S(sSeg), 0); a.br('s_cbranch_scc1', 'k2_fin')
    stamp(a, 4, '2')
    a.srd(rG, sWS, WT_SZ, WT_OFF)
    a.I('s_lshl_b32', S(sRown), 's2', 3); a.I('s_add_u32', S(sRown), S(sRown), S(sW)); a.I('s_min_u32', S(sRpar), S(sRown), 1791)
    a.I('v_lshrrev_b32', V(T), 3, V(vLane)); a.I('s_mov_b32', S(sT2), 46 * 16384); a.I('v_mul_lo_u32', V(T), V(T), S(sT2))
    a.I('v_and_b32', V(T + 1), 7, V(vLane)); a.I('v_lshl_add_u32', V(T), V(T + 1), 4, V(T))
    a.I('s_and_b32', S(sT2), S(sRown), 1); a.I('s_lshl_b32', S(sT2), S(sT2), 6); a.I('v_xor_b32', V(T + 1), S(sT2), V(T))
    a.I('s_and_b32', S(sT2), S(sRpar), 2); a.I('s_lshl_b32', S(sT2), S(sT2), 5); a.I('v_xor_b32', V(T + 2), S(sT2), V(T))
    a.I('s_lshl_b32', S(sT2), S(sRown), 8)
    for q in range(2): a.I('buffer_store_dwordx4', V(RTD + 4 * q, 4), V(T + 1), S(rG, 4), S(sT2), mod=f'offen offset:{q*128}')
    a.I('s_lshl_b32', S(sT2), S(sRpar), 7); a.I('s_add_u32', S(sT2), S(sT2), 4096 * 128)
    a.I('buffer_store_dwordx4', V(RTD + 8, 4), V(T + 2), S(rG, 4), S(sT2), mod='offen')
    a.I('s_mov_b32', S(sSeg), 1); a.I('s_mov_b32', S(sRem), S(sI))
    a.I('s_lshl_b32', S(sTBo), S(sI), 2); a.I('s_add_u32', S(sTBo), S(sTBo), S(sWp))
    a.br('s_branch', 'k2_seg')
    for f in ool: f()
    a.label('k2_fin'); stamp_out(a, name, '2', sW); tl_end(a, name, '2', sW)
    tail(a, name)
```

```python
from gen import *
import os
KN=os.environ.get('KN','')
def k3(a):
    name = 'k3_kernel'; head(a, name, 256); tl_start(a, '3')
    NS, R = 46, 5
    AS, AG, BUF, X = 0, 16, 32, 96
    vLane, vL16, vW1, vW2, vArd, vWrd, vX, T = 100, 101, 102, 103, 104, 105, 107, 108
    sW, sTT, sMT, sT, sT2, sM0, sAc, sAh, sKH, sT3 = range(34, 44); sRs, sRg = 68, 69
    rC, rH, rO, rD, rX, rOut = 44, 48, 52, 56, 60, 64
    a.I('v_and_b32', V(vLane), 63, 'v0'); a.I('v_lshrrev_b32', V(T), 6, 'v0'); a.I('v_readfirstlane_b32', S(sW), V(T))
    a.I('s_and_b32', S(sTT), 's2', 7); a.I('s_lshl_b32', S(sTT), S(sTT), 2); a.I('s_lshr_b32', S(sT), 's2', 6); a.I('s_add_u32', S(sTT), S(sTT), S(sT))
    a.I('s_bfe_u32', S(sMT), 's2', '0x30003')
    if 'mtx' in KN: a.I('s_xor_b32', S(sMT), S(sMT), 5)
    a.I('v_lshlrev_b32', V(vL16), 4, V(vLane))
    a.I('s_lshr_b32', S(sKH), S(sW), 2)
    a.I('s_lshl_b32', S(sT), S(sTT), 1); a.I('s_add_u32', S(sT), S(sT), S(sKH))
    a.I('s_and_b32', S(sT2), S(sW), 3); a.I('s_lshl_b32', S(sT2), S(sT2), 11)
    a.I('s_lshl_b32', S(sAc), S(sT), 18); a.I('s_add_u32', S(sAc), S(sAc), S(sT2))
    a.I('s_mul_i32', S(sAh), S(sT), 112 * 1024); a.I('s_add_u32', S(sAh), S(sAh), S(sT2))
    a.I('s_lshl_b32', S(sM0), S(sW), 11)
    a.I('s_mul_i32', S(sT3), S(sMT), 46 * 16384); a.I('s_add_u32', S(sT3), S(sT3), S(sM0)); a.I('v_add_u32', V(vW1), S(sT3), V(vL16))
    a.I('v_add_u32', V(vW2), 32 * 16384, V(vW1))
    a.I('s_and_b32', S(sT), S(sW), 1); a.I('s_lshl_b32', S(sT), S(sT), 13); a.I('s_lshl_b32', S(sT2), S(sKH), 12); a.I('s_add_u32', S(sT), S(sT), S(sT2))
    a.I('v_add_u32', V(vArd), S(sT), V(vL16))
    lane_w_setup(a, vLane, vWrd, 0, T, 9)
    a.I('s_bfe_u32', S(sT), S(sW), '0x10001'); a.I('s_lshl_b32', S(sT), S(sT), 6); a.I('v_xor_b32', V(vWrd), S(sT), V(vWrd))
    a.I('s_lshl_b32', S(sT), S(sKH), 13); a.I('s_add_u32', S(sT), S(sT), 16384); a.I('v_add_u32', V(vWrd), S(sT), V(vWrd))
    a.I('v_add_u32', V(vArd + 16), 65536, V(vArd)); a.I('v_add_u32', V(vWrd + 16), 65536, V(vWrd))
    a.I('v_add_u32', V(vArd + 18), 131072, V(vArd)); a.I('v_add_u32', V(vWrd + 18), 131072, V(vWrd))
    a.I('v_and_b32', V(T), 31, V(vLane)); a.I('v_lshlrev_b32', V(vX), 10, V(T))
    a.I('v_lshrrev_b32', V(T), 5, V(vLane)); a.I('v_lshl_add_u32', V(vX), V(T), 3, V(vX))
    a.I('s_lshl_b32', S(sT), S(sTT), 1); a.I('s_and_b32', S(sT2), S(sW), 1); a.I('s_add_u32', S(sT), S(sT), S(sT2)); a.I('s_lshl_b32', S(sT), S(sT), 15)
    a.I('s_lshl_b32', S(sT2), S(sMT), 7); a.I('s_add_u32', S(sT), S(sT), S(sT2))
    a.I('s_bfe_u32', S(sT2), S(sW), '0x10001'); a.I('s_lshl_b32', S(sT2), S(sT2), 6); a.I('s_add_u32', S(sT), S(sT), S(sT2))
    a.I('s_lshl_b32', S(sT2), S(sKH), 5); a.I('s_add_u32', S(sT), S(sT), S(sT2)); a.I('v_add_u32', V(vX), S(sT), V(vX))
    RM = os.environ.get('R3', 'x')
    if RM == 'x': a.I('s_and_b32', S(sT), 's2', 7); a.I('s_lshl_b32', S(sRs), S(sT), 15); a.I('s_mul_i32', S(sRg), S(sT), 7 * 2048); a.I('s_and_b32', S(sRg), S(sRg), hex(0xffffe000))
    elif RM == 't': a.I('s_lshl_b32', S(sRs), S(sTT), 13); a.I('s_mul_i32', S(sRg), S(sTT), 7 * 512); a.I('s_and_b32', S(sRg), S(sRg), hex(0xffffe000))
    elif RM == 'm': a.I('s_lshl_b32', S(sRs), S(sMT), 15); a.I('s_mul_i32', S(sRg), S(sMT), 7 * 2048); a.I('s_and_b32', S(sRg), S(sRg), hex(0xffffe000))
    else: a.I('s_mov_b32', S(sRs), 0); a.I('s_mov_b32', S(sRg), 0)
    a.I('s_waitcnt', 'lgkmcnt(0)')
    a.srd(rC, sWS, 16 << 20, CTX_OFF); a.srd(rH, sWS, 64 * 112 * 1024, HF_OFF); a.srd(rO, sWS, WT_SZ, WT_OFF)
    a.srd(rX, sX, 2 << 20); a.srd(rOut, sOUT, 2 << 20)
    dt = {}
    def dma(st):
        if st >= NS: return
        if 'nok3dma' in KN and st >= 4: dt[st] = dt[3]; return
        ph = st >= 32; s_ = st - 32 if ph else st; slot = (st % R) * 32768
        sR = sRg if ph else sRs
        a.I('s_add_u32', 'm0', S(sM0), hex(slot)); a.I('s_add_u32', S(sT), S(sAh if ph else sAc), S(sR))
        for q in range(2 if 'k3noa' not in KN else 0): dt[st] = a.I('buffer_load_dwordx4', V(vL16), S(rH if ph else rC, 4), S(sT), mod=f'offen offset:{q*1024} lds')
        if 'k3now' in KN: return
        a.I('s_add_u32', 'm0', S(sM0), hex(slot + 16384)); a.I('s_lshl_b32', S(sT), S(sR), 1)
        a.I('s_add_u32', S(sR), S(sR), 8192)
        if ph: a.I('s_cmp_eq_u32', S(sR), 14 * 8192); a.I('s_cselect_b32', S(sR), 0, S(sR))
        else: a.I('s_and_b32', S(sR), S(sR), hex(32 * 8192 - 1))
        for q in range(2): dt[st] = a.I('buffer_load_dwordx4', V(vW2 if ph else vW1), S(rO, 4), S(sT), mod=f'offen offset:{q*1024} lds')
    for st in range(R - 1): dma(st)
    for q in range(2 if 'nox' not in KN else 0): xt = a.I('buffer_load_dwordx2', V(X + 2 * q, 2), V(vX), S(rX, 4), 0, mod=f'offen offset:{q*16}')
    def mm(st, q):
        b = BUF + (st % 2) * 32 + q * 8; d = V(AG if st >= 32 else AS, 16)
        a.I(MF, d, V(b + 4, 4), V(b, 4), 0 if (st in (0, 32) and q == 0) else d)
    for st in range(NS + 1):
        if st < NS:
            a.wvm(dt[st])
        a.wlg(a.lg)
        if st < NS:
            a.I('s_barrier')
            sl = st % R; ra = (0, 0, 16, 16, 18)[sl]; off = (sl & 1) * 32768 if sl < 4 else 0
        for q in range(4):
            if st < NS:
                b = BUF + (st % 2) * 32 + q * 8
                a.I('ds_read_b128', V(b, 4), V(vArd + ra), mod=f'offset:{off + q*1024}')
                a.I('ds_read_b64_tr_b16', V(b + 4, 2), V(vWrd + ra), mod=f'offset:{off + q*2048}')
                a.I('ds_read_b64_tr_b16', V(b + 6, 2), V(vWrd + ra), mod=f'offset:{off + q*2048 + 1024}')
            if st: mm(st - 1, q)
            if q == 0: dma(st + R - 1)
    a.I('s_barrier')
    a.I('s_lshl_b32', S(sT), S(sW), 12); a.I('v_add_u32', V(T), S(sT), V(vL16))
    a.I('s_xor_b32', S(sT), S(sT), 16384); a.I('v_add_u32', V(T + 1), S(sT), V(vL16))
    a.I('s_cmp_eq_u32', S(sKH), 0); a.br('s_cbranch_scc1', 'k3_e0')
    for kh in (1, 0):
        if kh == 0: a.label('k3_e0')
        for n, src in enumerate((AS + 8 * (1 - kh), AS + 8 * (1 - kh) + 4, AG + 8 * (1 - kh), AG + 8 * (1 - kh) + 4)):
            a.I('ds_write_b128', V(T), V(src, 4), mod=f'offset:{n*1024}')
        for i in range(8):
            a.I('v_mov_b32', V(BUF + 16 + i), V(AS + 8 * kh + i)); a.I('v_mov_b32', V(BUF + 24 + i), V(AG + 8 * kh + i))
        if kh == 1: a.br('s_branch', 'k3_e1')
    a.label('k3_e1')
    a.I('s_waitcnt', 'lgkmcnt(0)'); a.lg_done = a.lg; a.I('s_barrier')
    for n in range(4): a.I('ds_read_b128', V(BUF + 4 * n, 4), V(T + 1), mod=f'offset:{n*1024}')
    a.wlg(a.lg)
    Sx, G, E, XF = BUF, BUF + 8, BUF + 32, BUF + 40
    for i in range(16): a.I('v_add_f32', V(BUF + i), V(BUF + i), V(BUF + 16 + i))
    def rnd(r):
        for j in range(4): a.I('v_cvt_pk_bf16_f32', V(T + 2 + j), V(r + 2 * j), V(r + 2 * j + 1))
        for j in range(4):
            a.I('v_lshlrev_b32', V(r + 2 * j), 16, V(T + 2 + j)); a.I('v_and_b32', V(r + 2 * j + 1), '0xffff0000', V(T + 2 + j))
    rnd(Sx); rnd(G)
    for i in range(8): a.I('v_mul_f32', V(E + i), '0xbfb8aa3b', V(G + i))
    for i in range(8): a.I('v_exp_f32', V(E + i), V(E + i))
    for i in range(8): a.I('v_add_f32', V(E + i), 1.0, V(E + i))
    for i in range(8): a.I('v_rcp_f32', V(E + i), V(E + i))
    for i in range(8): a.I('v_mul_f32', V(G + i), V(G + i), V(E + i))
    rnd(G)
    for i in range(8): a.I('v_mul_f32', V(Sx + i), V(Sx + i), V(G + i))
    rnd(Sx)
    if 'nox' not in KN: a.wvm(xt)
    for j in range(4):
        a.I('v_lshlrev_b32', V(XF + 2 * j), 16, V(X + j)); a.I('v_and_b32', V(XF + 2 * j + 1), '0xffff0000', V(X + j))
    for i in range(8): a.I('v_add_f32', V(Sx + i), V(Sx + i), V(XF + i))
    for j in range(4): a.I('v_cvt_pk_bf16_f32', V(X + j), V(Sx + 2 * j), V(Sx + 2 * j + 1))
    for q in range(2): a.I('buffer_store_dwordx2', V(X + 2 * q, 2), V(vX), S(rOut, 4), 0, mod=f'offen offset:{q*16}')
    tl_end(a, name, '3', sW)
    tail(a, name)
```

```python
import sys
sys.path.insert(0, 'dev')
from asmlib import *
XN_OFF, KV_OFF, HF_OFF, CTX_OFF, WT_OFF = 0, 2 << 20, 36 << 20, 44 << 20, 60 << 20
WT_SZ = 8 * 46 * 16384
MF = 'v_mfma_f32_32x32x16_bf16'
NAME = 'recurrent_scan__compressed_kv_cla__glu_gated_glu__prompt'
sX, sCKV, sWQ, sWUK, sWUV, sWO, sBX, sWG, sWU, sWD, sOUT, sDBG, sWS = 8, 10, 12, 14, 16, 18, 20, 22, 24, 26, 28, 30, 32

def head(a, name, nwg):
    a.raw(f".globl {name}\n.p2align 8\n.type {name},@function\n{name}:")
    a.I('s_cmp_ge_u32', 's2', nwg); a.br('s_cbranch_scc1', name + '_end')
    a.I('s_load_dwordx16', S(8, 16), S(0, 2), 0)
    a.I('s_load_dwordx8', S(24, 8), S(0, 2), 64)
    a.I('s_load_dwordx2', S(32, 2), S(0, 2), 96)
import os
KN = os.environ.get('KN', '')
STM = (' ' + os.environ['ST']) if os.environ.get('ST') else ''
def stamp(a, k, kern):
    if 'stamp' + kern in KN.split(','): a.I('s_memrealtime' if k in (0, 6) and 'real' in KN else 's_memtime', S(88 + 2 * k, 2))
def stamp_out(a, name, kern, sW):
    if 'stamp' + kern not in KN.split(','): return
    stamp(a, 6, kern)
    a.I('s_cmp_eq_u32', 's2', int(os.environ.get('SWG', '0'))); a.br('s_cbranch_scc0', name + '_end')
    a.I('s_cmp_eq_u32', S(sW), int(os.environ.get('SWV', '0'))); a.br('s_cbranch_scc0', name + '_end')
    a.I('s_waitcnt', 'lgkmcnt(0)'); a.srd(4, sDBG, 256)
    for k in range(7):
        a.I('s_sub_u32', S(3), S(88 + 2 * k), S(88)); a.I('v_mov_b32', 'v0', S(3))
        a.I('buffer_store_dword', 'v0', 'off', S(4, 4), 0, mod=f'offset:{4*k}')
def tl_start(a, kern):
    if 'tl' + kern in KN.split(','): a.I('s_memrealtime', S(88, 2))
def tl_end(a, name, kern, sW):
    if 'tl' + kern not in KN.split(','): return
    if 'tlw' in KN: a.wall()
    a.I('s_memrealtime', S(90, 2))
    if 'tlx' in KN: a.I('s_lshr_b32', S(3), 's2', 5)
    else: a.I('s_and_b32', S(3), 's2', 7)
    a.I('s_cmp_eq_u32', S(3), int(os.environ.get('SWG', '0'))); a.br('s_cbranch_scc0', name + '_end')
    a.I('s_cmp_eq_u32', S(sW), int(os.environ.get('SWV', '0'))); a.br('s_cbranch_scc0', name + '_end')
    a.I('s_waitcnt', 'lgkmcnt(0)'); a.srd(4, sDBG, 256)
    if 'tlx' in KN: a.I('s_and_b32', S(3), 's2', 31); a.I('s_lshl_b32', S(3), S(3), 3)
    else: a.I('s_and_b32', S(3), 's2', 0xf8)
    a.I('v_mov_b32', 'v0', S(88)); a.I('v_mov_b32', 'v1', S(90))
    a.I('buffer_store_dwordx2', V(0, 2), 'off', S(4, 4), S(3))
def tail(a, name):
    a.label(name + '_end'); a.I('s_endpgm')
def desc(name, nv=256):
    return f""".p2align 6
.amdhsa_kernel {name}
  .amdhsa_next_free_vgpr {nv}
  .amdhsa_next_free_sgpr 102
  .amdhsa_accum_offset {nv}
  .amdhsa_group_segment_fixed_size 0
  .amdhsa_kernarg_size 104
  .amdhsa_user_sgpr_count 2
  .amdhsa_user_sgpr_kernarg_segment_ptr 1
  .amdhsa_system_sgpr_workgroup_id_x 1
.end_amdhsa_kernel
"""
def red64(a, v, t, op='v_add_f32'):
    for m in ('quad_perm:[1,0,3,2]', 'quad_perm:[2,3,0,1]', 'row_half_mirror', 'row_mirror'):
        a.I(op + '_dpp', V(v), V(v), V(v), mod=m + ' row_mask:0xf bank_mask:0xf')
    for sw in ('v_permlane16_swap_b32', 'v_permlane32_swap_b32'):
        a.I('v_mov_b32', V(t), V(v)); a.I(sw, V(t), V(v)); a.I(op, V(v), V(v), V(t))

def lane_w_setup(a, vLane, vWrd, ringbase, T, hishift=10):
    a.I('v_lshrrev_b32', V(T), 5, V(vLane)); a.I('v_lshlrev_b32', V(vWrd), hishift, V(T))
    a.I('v_bfe_u32', V(T), V(vLane), 2, 2); a.I('v_lshl_add_u32', V(vWrd), V(T), 7, V(vWrd))
    a.I('v_bfe_u32', V(T), V(vLane), 3, 1); a.I('v_lshl_add_u32', V(vWrd), V(T), 6, V(vWrd))
    a.I('v_bfe_u32', V(T), V(vLane), 4, 1); a.I('v_lshl_add_u32', V(vWrd), V(T), 5, V(vWrd))
    a.I('v_and_b32', V(T), 3, V(vLane)); a.I('v_lshl_add_u32', V(vWrd), V(T), 3, V(vWrd))
    if ringbase: a.I('v_add_u32', V(vWrd), hex(ringbase), V(vWrd))
    a.I('v_xor_b32', V(vWrd + 1), 64, V(vWrd))
def w_voff(a, vd, vLane, sW, stride, sCol, T, sT):
    a.I('v_lshrrev_b32', V(T), 3, V(vLane)); a.I('s_lshl_b32', S(sT), S(sW), 3)
    a.I('v_add_u32', V(T), S(sT), V(T)); a.I('s_movk_i32', S(sT), stride)
    a.I('v_mul_lo_u32', V(vd), V(T), S(sT))
    a.I('v_and_b32', V(T), 7, V(vLane)); a.I('v_lshl_add_u32', V(vd), V(T), 4, V(vd))
    a.I('v_bfe_u32', V(T), V(vLane), 4, 1); a.I('v_lshlrev_b32', V(T), 6, V(T)); a.I('v_xor_b32', V(vd), V(vd), V(T))
    a.I('v_add_u32', V(vd), S(sCol), V(vd))

def rotc(a, sD, sRot, c):
    if 'norot' in KN: a.I('s_mov_b32', S(sD), c)
    else: a.I('s_add_u32', S(sD), S(sRot), c); a.I('s_and_b32', S(sD), S(sD), 7)
class Gemm:
    def __init__(g, a, passes, ACT, ACC, WF, vWrd, sWm0, sT, sRot=None):
        g.__dict__.update(locals()); g.wt = {}; g.ft = {}; g.q = []; g.defer = False
    def put(g, f):
        if g.defer: g.q.append(f)
        else: f()
    def dma(g, C):
        a = g.a
        if C >= 8 * len(g.passes): return
        p = g.passes[C // 8]; c = C % 8
        def f(u):
            if u == 0: rotc(a, g.sT, g.sRot, c); a.I('s_mul_i32', S(g.sT), S(g.sT), hex(64 * p['stride']))
            a.I('s_add_u32', 'm0', S(g.sWm0), hex((C % 4) * 16384 + u * 8192 - p['uoff'][u]))
            g.wt[C] = a.I('buffer_load_dwordx4', V(p['voff']), S(p['srd'][u], 4), S(g.sT), mod=f"offen offset:{p['uoff'][u]} lds")
        for u in (0, 1): g.put(lambda u=u: f(u))
    def rd(g, t, nb):
        C, ks = divmod(t, 4)
        if C >= 8 * len(g.passes): return
        off = (C % 4) * 16384 + (nb >> 1) * 8192 + ks * 2048
        r = g.WF + (t % 2) * 16 + nb * 4
        g.a.I('ds_read_b64_tr_b16', V(r, 2), V(g.vWrd + (nb & 1)), mod=f'offset:{off}')
        g.ft[t, nb] = g.a.I('ds_read_b64_tr_b16', V(r + 2, 2), V(g.vWrd + (nb & 1)), mod=f'offset:{off+512}')
    def run(g, mid_hook=lambda C: None, act_wait=lambda t: None):
        a = g.a; n = 32 * len(g.passes); g.defer = 'nospread' not in KN; qn = 2 * len(g.q); acc = 0
        for nb in range(4): g.rd(0, nb)
        for t in range(n):
            C, ks = divmod(t, 4); p = g.passes[C // 8]
            act_wait(t)
            for nb in range(4):
                g.rd(t + 1, nb)
                a.wlg(g.ft[t, nb])
                w = V(g.WF + (t % 2) * 16 + nb * 4, 4); x = V(g.ACT + (t % 32) * 4, 4); d = V(g.ACC + nb * 16, 16)
                A, B = (x, w) if p['swap'] else (w, x)
                a.I(MF, d, A, B, d if t % 32 else 0)
                acc += qn
                while g.q and acc >= 16: g.q.pop(0)(); acc -= 16
            if ks == 1:
                while g.q: g.q.pop(0)()
                if C + 1 in g.wt:
                    a.wvm(g.wt[C + 1]); a.I('s_barrier')
                mid_hook(C); g.dma(C + 3)
                qn = len(g.q); acc = 0
                if g.q: g.q.pop(0)()
            if t % 32 == 31: p['epi']()

def pack_store(a, src, T, voff, srd, sO, base, nfr=8):
    for f in range(nfr):
        t = T + (f % 2) * 4
        for j in range(4): a.I('v_cvt_pk_bf16_f32', V(t + j), V(src + f * 8 + 2 * j), V(src + f * 8 + 2 * j + 1))
        if f % 4 == 0: a.I('s_mov_b32', S(sO), hex(base + f * 1024))
        a.I('buffer_store_dwordx4', V(t, 4), V(voff), S(srd, 4), S(sO), mod=f'offen offset:{(f%4)*1024}' + STM)

def k1(a):
    name = 'k1_kernel'; head(a, name, 256); stamp(a, 0, '1'); stamp(a, 0, '1s'); tl_start(a, '1')
    ACC, ACT, WF = 0, 64, 192
    vLane, vWrd, vWo, vSegE, vSegO, vSA, vKV, T = 224, 234, 226, 227, 228, 229, 233, 236
    sW, sH, sRT, sT, sT2, sWm0, sSm0, sSeg, sTok = 34, 35, 36, 37, 38, 39, 40, 41, 42
    rX, rC, rK, rV, rXN, rKV = 44, 48, 52, 56, 60, 64
    a.I('v_and_b32', V(vLane), 63, 'v0'); a.I('v_lshrrev_b32', V(T), 6, 'v0'); a.I('v_readfirstlane_b32', S(sW), V(T))
    a.I('s_and_b32', S(sH), 's2', 7); a.I('s_lshl_b32', S(sH), S(sH), 2); a.I('s_bfe_u32', S(sT), 's2', '0x20003'); a.I('s_add_u32', S(sH), S(sH), S(sT))
    a.I('s_lshr_b32', S(sRT), 's2', 5)
    a.I('s_lshl_b32', S(sTok), 's2', 3); a.I('s_add_u32', S(sTok), S(sTok), S(sW))
    lane_w_setup(a, vLane, vWrd, 98304, T)
    a.I('s_lshl_b32', S(sT2), S(sH), 8)
    w_voff(a, vWo, vLane, sW, 8192, sT2, T, sT)
    a.I('v_lshrrev_b32', V(T), 3, V(vLane)); a.I('v_lshrrev_b32', V(T + 1), 4, V(vLane)); a.I('v_and_b32', V(T + 2), 7, V(vLane))
    a.I('v_xor_b32', V(T + 1), V(T + 1), V(T + 2)); a.I('v_lshlrev_b32', V(T + 1), 4, V(T + 1))
    a.I('v_lshl_add_u32', V(vSegE), V(T), 10, V(T + 1)); a.I('v_xor_b32', V(vSegO), 64, V(vSegE))
    a.I('s_mul_i32', S(sSm0), S(sW), 12288)
    a.I('v_and_b32', V(T), 31, V(vLane)); a.I('v_bfe_u32', V(T + 1), V(vLane), 1, 3); a.I('v_lshrrev_b32', V(T + 2), 5, V(vLane))
    a.I('v_xor_b32', V(T + 1), V(T + 1), V(T + 2)); a.I('v_lshlrev_b32', V(T + 1), 4, V(T + 1))
    a.I('v_lshl_add_u32', V(T), V(T), 7, V(T + 1)); a.I('v_add_u32', V(vSA), S(sSm0), V(T))
    for k in (1, 2, 3): a.I('v_xor_b32', V(vSA + k), k * 32, V(vSA))
    a.I('s_lshl_b32', S(sWm0), S(sW), 10); a.I('s_add_u32', S(sWm0), S(sWm0), 98304)
    a.I('s_lshl_b32', S(sSeg), S(sRT), 3); a.I('s_add_u32', S(sSeg), S(sSeg), S(sW)); a.I('s_lshl_b32', S(sSeg), S(sSeg), 15)
    a.I('s_lshl_b32', S(sT), S(sH), 20); a.I('s_lshl_b32', S(sT2), S(sRT), 17); a.I('s_add_u32', S(sT), S(sT), S(sT2))
    a.I('s_lshr_b32', S(sT2), S(sW), 1); a.I('s_lshl_b32', S(sT2), S(sT2), 15); a.I('s_add_u32', S(sT), S(sT), S(sT2))
    a.I('s_and_b32', S(sT2), S(sW), 1); a.I('s_lshl_b32', S(sT2), S(sT2), 13); a.I('s_add_u32', S(sT), S(sT), S(sT2))
    vL16 = 225; a.I('v_lshlrev_b32', V(vL16), 4, V(vLane)); a.I('v_add_u32', V(vKV), S(sT), V(vL16))
    a.I('s_waitcnt', 'lgkmcnt(0)'); stamp(a, 1, '1s')
    a.srd(rX, sX, 2 << 20); a.srd(rC, sCKV, 2 << 20); a.srd(rK, sWUK, 4 << 20); a.srd(rV, sWUV, 4 << 20)
    a.srd(rXN, sWS, 2 << 20, XN_OFF); a.srd(rKV, sWS, 32 << 20, KV_OFF)
    X = T + 4
    a.I('s_lshl_b32', S(sT), S(sTok), 10)
    xt = a.I('buffer_load_dwordx4', V(X, 4), V(vL16), S(rX, 4), S(sT), mod='offen')
    def epi(kv): return lambda: pack_store(a, ACC, T, vKV, rKV, sT2, kv * 16384)
    g = Gemm(a, [dict(stride=8192, uoff=(0, 128), voff=vWo, srd=(rK, rK), swap=False, epi=epi(0)),
                 dict(stride=8192, uoff=(0, 128), voff=vWo, srd=(rV, rV), swap=True, epi=epi(1))], ACT, ACC, WF, vWrd, sWm0, sT, sRT)
    sQ = 43
    def seg_dma(s):
        if s > 7: return
        def f(q):
            if q == 0: rotc(a, sQ, sRT, s); a.I('s_lshl_b32', S(sQ), S(sQ), 7); a.I('s_add_u32', S(sQ), S(sQ), S(sSeg))
            else: a.I('s_add_u32', S(sQ), S(sQ), 8192)
            a.I('s_add_u32', 'm0', S(sSm0), hex((s % 3) * 4096 + q * 1024))
            a.I('buffer_load_dwordx4', V(vSegO if q & 1 else vSegE), S(rC, 4), S(sQ), mod='offen lds')
        for q in range(4): g.put(lambda q=q: f(q))
    at = {}
    def seg_rd(s):
        if s > 7: return
        for k in range(4): at[4 * s + k] = a.I('ds_read_b128', V(ACT + (4 * s + k) * 4, 4), V(vSA + k), mod=f'offset:{(s%3)*4096}')
    NI = int(os.environ.get('NI', '1'))
    for s in range(NI): seg_dma(s); g.dma(s)
    F = 0; Sm = 8; Tm = 9; D = 10; M = 18
    stamp(a, 2, '1s'); a.wvm(xt)
    for j in range(4):
        a.I('v_lshlrev_b32', V(F + 2 * j), 16, V(X + j)); a.I('v_and_b32', V(F + 2 * j + 1), '0xffff0000', V(X + j))
    a.I('v_add_f32', V(Sm), V(F), V(F + 1))
    for j in range(2, 8): a.I('v_add_f32', V(Sm), V(Sm), V(F + j))
    red64(a, Sm, Tm)
    a.I('v_mul_f32', V(M), '0x3b000000', V(Sm))
    for j in range(8): a.I('v_sub_f32', V(D + j), V(F + j), V(M))
    a.I('v_mul_f32', V(Sm), V(D), V(D))
    for j in range(1, 8): a.I('v_fmac_f32', V(Sm), V(D + j), V(D + j))
    red64(a, Sm, Tm)
    def rbf(r): a.I('v_cvt_pk_bf16_f32', V(r), V(r), V(r)); a.I('v_lshlrev_b32', V(r), 16, V(r))
    a.I('v_mul_f32', V(Sm), '0x3b000000', V(Sm)); rbf(Sm)
    a.I('v_add_f32', V(Sm), '0x3727c5ac', V(Sm)); rbf(Sm)
    a.I('v_sqrt_f32', V(Sm), V(Sm)); rbf(Sm); a.I('v_rcp_f32', V(Sm), V(Sm)); rbf(M)
    for j in range(8): a.I('v_sub_f32', V(D + j), V(F + j), V(M))
    for j in range(4): a.I('v_cvt_pk_bf16_f32', V(X + j), V(D + 2 * j), V(D + 2 * j + 1))
    for j in range(4):
        a.I('v_lshlrev_b32', V(F + 2 * j), 16, V(X + j)); a.I('v_and_b32', V(F + 2 * j + 1), '0xffff0000', V(X + j))
    for j in range(8): a.I('v_mul_f32', V(F + j), V(F + j), V(Sm))
    for j in range(4): a.I('v_cvt_pk_bf16_f32', V(X + j), V(F + 2 * j), V(F + 2 * j + 1))
    a.I('v_lshrrev_b32', V(T), 1, V(vLane)); a.I('v_and_b32', V(T + 1), 1, V(vLane)); a.I('v_lshlrev_b32', V(T + 1), 9, V(T + 1))
    a.I('v_lshl_add_u32', V(T), V(T), 10, V(T + 1))
    a.I('s_lshr_b32', S(sT), S(sTok), 5); a.I('s_lshl_b32', S(sT), S(sT), 15); a.I('s_and_b32', S(sT2), S(sTok), 31)
    a.I('s_lshl_b32', S(sT2), S(sT2), 4); a.I('s_add_u32', S(sT), S(sT), S(sT2))
    stamp(a, 3, '1s'); a.wvm(g.wt[0]); stamp(a, 4, '1s')
    a.I('buffer_store_dwordx4', V(X, 4), V(T), S(rXN, 4), S(sT), mod='offen')
    a.I('s_barrier'); stamp(a, 1, '1')
    if 'stamp1s' in KN: stamp(a, 5, '1s'); a.wall(); stamp_out(a, name, '1s', sW); a.br('s_branch', name + '_end')
    for s in range(NI, 3): seg_dma(s); g.dma(s)
    seg_rd(0)
    P0 = int(os.environ.get('PF0', '9')); PF = {P0: (sWG, 512 * 3584), P0 + 1: (sWU, 512 * 3584), P0 + 2: (sWQ, 4 << 20)}; rPF = 68
    def mid(C):
        seg_dma(C + 3) if C < 8 else None
        if C in (3, 7, 11, 15): stamp(a, 2 + C // 4, '1')
        if C in PF and 'nopf' not in KN:
            ptr, nb = PF[C]; big = nb == 4 << 20
            def f(q):
                if q == 0: a.srd(rPF, ptr, nb); a.I('s_min_u32', S(sQ), S(sTok), 2047 if big else 1791); a.I('s_lshl_b32', S(sQ), S(sQ), 11 if big else 10)
                a.I('buffer_load_dwordx4', V(T + 12, 4), V(vL16), S(rPF, 4), S(sQ), mod=f'offen offset:{q*1024}')
            for q in range(2 if big else 1): g.put(lambda q=q: f(q))
    g0 = g.dma
    def dma2(C): g0(C); seg_rd(C - 2) if C - 2 < 8 else None
    g.dma = dma2
    g.run(mid, lambda t: a.wlg(at.get(t)) if t < 32 else None)
    stamp_out(a, name, '1', sW); tl_end(a, name, '1', sW)
    tail(a, name)

def build(kernels, path):
    a = Asm()
    ref = open(f'cdna_kernels/{NAME}.s.ref').read().split('\n')
    hdr = [l for l in ref if l.startswith(';') and '@launch' not in l and 'Override' not in l and 'grid=ceil' not in l]
    for l in hdr: a.raw(l)
    for (fn, nm, lds) in kernels: a.raw(f"; @launch kernel={nm} grid=(256,1,1) block=(512,1,1) lds={lds}")
    a.raw('.amdgcn_target "amdgcn-amd-amdhsa--gfx950"\n.text')
    for (fn, nm, lds) in kernels:
        b = Asm(); fn(b); a.out += b.out; print(nm, b.ninst, 'instructions')
    a.raw('.section .rodata,"a"')
    for (fn, nm, lds) in kernels: a.raw(desc(nm))
    open(path, 'w').write(a.text())
if __name__ == '__main__':
    ks = [(k1, 'k1_kernel', 163840)]
    try:
        from gen2 import k2; ks.append((k2, 'k2_kernel', 163840))
        from gen3 import k3; ks.append((k3, 'k3_kernel', 163840))
    except ImportError as e: print(e)
    build(ks, sys.argv[1] if len(sys.argv) > 1 else f'cdna_kernels/{NAME}.s')
```
